```python
import torch

def _softmax(x, axis=-1):
    return torch.softmax(x, dim=axis)
def _gelu(x):
    return torch.nn.functional.gelu(x, approximate="tanh")
def _silu(x):
    return torch.nn.functional.silu(x)
def _sigmoid(x):
    return torch.sigmoid(x)
def _layernorm(x, axis=-1, eps=1e-5):
    m = x.mean(dim=axis, keepdim=True)
    v = x.var(dim=axis, keepdim=True, unbiased=False)
    return (x - m) / torch.sqrt(v + eps)
def _scatter_add(tgt, idx, src, axis=0):
    return tgt.clone().index_add_(axis, idx, src)
def _segment_sum(src, seg, n):
    out = torch.zeros((n,) + src.shape[1:], dtype=src.dtype)
    return out.index_add_(0, seg, src)
def _pad(x, pw):
    flat = tuple(v for pair in reversed(pw) for v in pair)
    return torch.nn.functional.pad(x, flat)

kernel_name = 'recurrent_scan__sliding_block_cached__mixer_token_mlp__prompt'

def setup_inputs():

    _w = (lambda a: (lambda t: t.to(torch.bfloat16) if t.is_floating_point() else t)(torch.as_tensor(a)))
    def _A_setup():
        B, Sq, D = 1, 2048, 1024
        Hq, Hkv, Sk, Dh = 32, 4, 2048, 128
        assert Hq % Hkv == 0, (Hq, Hkv)
        return {
            "x": _w((lambda *s: torch.randn(*s, dtype=torch.bfloat16) * 0.05)(B, Sq, D)),
            "k_cache": _w((lambda *s: torch.randn(*s, dtype=torch.bfloat16) * 1.6)(B, Hkv, Sk, Dh)),
            "v_cache": _w((lambda *s: torch.randn(*s, dtype=torch.bfloat16) * 0.8)(B, Hkv, Sk, Dh)),
            "wq": _w((lambda *s: torch.randn(*s, dtype=torch.bfloat16) * 1.6)(D, Hq * Dh) * (D ** -0.5)),
            "wo": _w((lambda *s: torch.randn(*s, dtype=torch.bfloat16) * 0.8)(Hq * Dh, D) * ((Hq * Dh) ** -0.5)),
        }
    _A_in = _A_setup()

    def _B_setup():
        B, S, D, F = 1, 2048, 1024, 3584
        return {
            "x": _w((lambda *s: torch.randn(*s, dtype=torch.bfloat16) * 0.05)(B, S, D)),
            "w1": _w((lambda *s: torch.randn(*s, dtype=torch.bfloat16) * 1.6)(S, F) * (S ** -0.5)),
            "b1": _w((lambda *s: torch.randn(*s, dtype=torch.bfloat16) * 1.6)(F) * 0.02),
            "w2": _w((lambda *s: torch.randn(*s, dtype=torch.bfloat16) * 0.2)(F, S) * (F ** -0.5)),
            "b2": _w((lambda *s: torch.randn(*s, dtype=torch.bfloat16) * 0.2)(S) * 0.02),
        }
    _B_in = _B_setup()

    return {
        "A_x": _A_in["x"],
        "A_k_cache": _A_in["k_cache"],
        "A_v_cache": _A_in["v_cache"],
        "A_wq": _A_in["wq"],
        "A_wo": _A_in["wo"],
        "B_x": _B_in["x"],
        "B_w1": _B_in["w1"],
        "B_b1": _B_in["b1"],
        "B_w2": _B_in["w2"],
        "B_b2": _B_in["b2"],
    }

def reference(A_x, A_k_cache, A_v_cache, A_wq, A_wo, B_x, B_w1, B_b1, B_w2, B_b2):
    def _A_ref(x, k_cache, v_cache, wq, wo):
        B, Sq, D = x.shape
        Hq, Dh = 32, 128
        Hkv, Sk = k_cache.shape[1], k_cache.shape[2]
        W = min(4096, max(256, Sk // 4))
        rep = Hq // Hkv
        q = (lambda x, *d: x.permute(*d))((x @ wq).reshape(B, Sq, Hq, Dh), 0, 2, 1, 3)
        k = (lambda x, n, axis: torch.repeat_interleave(x, n, dim=axis))(k_cache[:, :, Sk - W:, :], rep, axis=1)
        v = (lambda x, n, axis: torch.repeat_interleave(x, n, dim=axis))(v_cache[:, :, Sk - W:, :], rep, axis=1)
        scores = torch.einsum("bhqd,bhkd->bhqk", q, k) * (Dh ** -0.5)
        p = _softmax(scores, axis=-1)
        o = torch.einsum("bhqk,bhkd->bhqd", p, v)
        return (lambda x, *d: x.permute(*d))(o, 0, 2, 1, 3).reshape(B, Sq, Hq * Dh) @ wo

    def _B_ref(x, w1, b1, w2, b2):
        B, S, D = x.shape
        h = _layernorm(x, axis=-1)
        u = torch.einsum("bsd,sf->bdf", h, w1) + b1
        u = _gelu(u)
        y = torch.einsum("bdf,fs->bds", u, w2) + b2
        return (lambda x, *d: x.permute(*d))(y, 0, 2, 1)

    x = A_x
    xn = _layernorm(x, axis=-1)
    s = _A_ref(xn, A_k_cache, A_v_cache, A_wq, A_wo)
    g = _silu(_B_ref(xn, B_w1, B_b1, B_w2, B_b2))
    return x + s * g
```

```python
import re

REG_RE = re.compile(r'^(-?)(?:abs\()?([vas])(?:(\d+)|\[(\d+):(\d+)\])\)?$')


def parse_reg(tok):
    tok = tok.strip()
    m = REG_RE.match(tok)
    if m:
        kind = m.group(2)
        if m.group(3) is not None:
            lo = hi = int(m.group(3))
        else:
            lo, hi = int(m.group(4)), int(m.group(5))
        return [(kind, i) for i in range(lo, hi + 1)]
    if tok == 'vcc':
        return [('vcc', 0)]
    if tok == 'exec':
        return [('exec', 0)]
    if tok == 'm0':
        return [('m0', 0)]
    return []


TRANS = ('v_exp_f32', 'v_log_f32', 'v_rcp_f32', 'v_rsq_f32', 'v_sqrt_f32', 'v_sin_f32', 'v_cos_f32')


class Ins:
    __slots__ = ('text', 'op', 'dst', 'src', 'kind', 'srcc', 'srcab', 'nstates', 'sregs_vmem', 'storedata')

    def __init__(self, text):
        self.text = text
        t = text.split(';')[0].strip()
        parts = t.split(None, 1)
        op = parts[0]
        self.op = op
        rest = parts[1] if len(parts) > 1 else ''
        ops = []
        cur = ''
        depth = 0
        for ch in rest:
            if ch in '[(':
                depth += 1
            if ch in '])':
                depth -= 1
            if ch == ',' and depth == 0:
                ops.append(cur.strip())
                cur = ''
            else:
                cur += ch
        if cur.strip():
            ops.append(cur.strip())
        mods = ''
        if ops:
            lp = ops[-1].split(None, 1)
            ops[-1] = lp[0]
            mods = lp[1] if len(lp) > 1 else ''
        R = [parse_reg(o) for o in ops]
        self.dst = []
        self.src = []
        self.srcc = []
        self.srcab = []
        self.sregs_vmem = []
        self.storedata = []
        self.nstates = 1
        self.kind = 'other'
        if op.startswith('v_mfma'):
            self.kind = 'mfma'
            self.dst = R[0]
            self.srcab = R[1] + R[2]
            self.srcc = R[3]
            self.src = self.srcab + self.srcc
        elif op.startswith('v_cmp'):
            self.kind = 'valu'
            self.dst = R[0]
            self.src = sum(R[1:], [])
        elif op.startswith('v_permlane') and 'swap' in op:
            self.kind = 'valu'
            self.dst = R[0] + R[1]
            self.src = R[0] + R[1]
        elif op.startswith('v_'):
            self.kind = 'valu'
            self.dst = R[0]
            self.src = sum(R[1:], [])
            if op.startswith(('v_fmac', 'v_dot2c', 'v_pk_fmac')) or 'dpp' in op or 'row_' in mods or 'quad_perm' in mods:
                self.src = self.src + R[0]
            if op.startswith('v_cndmask') and len(ops) == 3:
                self.src = self.src + [('vcc', 0)]
        elif op.startswith('ds_read') or op.startswith('ds_bpermute') or op.startswith('ds_swizzle'):
            self.kind = 'lds_ld'
            self.dst = R[0]
            self.src = sum(R[1:], [])
        elif op.startswith('ds_write'):
            self.kind = 'lds_st'
            self.src = sum(R, [])
        elif op.startswith('buffer_load') or op.startswith('global_load'):
            if re.search(r'\blds\b', mods):
                self.kind = 'dma'
                self.src = sum(R, []) + [('m0', 0)]
            else:
                self.kind = 'vm_ld'
                self.dst = R[0]
                self.src = sum(R[1:], [])
            self.sregs_vmem = [r for r in self.src if r[0] == 's']
        elif op.startswith('buffer_store') or op.startswith('buffer_atomic'):
            self.kind = 'vm_st'
            self.src = sum(R, [])
            self.sregs_vmem = [r for r in self.src if r[0] == 's']
            if 'x4' in op or 'x3' in op:
                self.storedata = R[0]
        elif op in ('buffer_wbl2', 'buffer_inv'):
            self.kind = 'vm_st'
        elif op.startswith('s_load') or op.startswith('s_memtime') or op.startswith('s_memrealtime'):
            self.kind = 'smem'
            self.dst = R[0]
            self.src = sum(R[1:], [])
        elif op == 's_nop':
            self.kind = 'nop'
            self.nstates = int(ops[0], 0) + 1
        elif op.startswith(('s_cmp', 's_cbranch', 's_branch', 's_barrier', 's_waitcnt', 's_endpgm', 's_sleep', 's_setprio', 's_bitcmp', 's_call', 's_setpc')):
            self.kind = 'sctl'
            self.src = sum(R, [])
            if 'vcc' in op:
                self.src = [('vcc', 0)]
        elif op.startswith('s_'):
            self.kind = 'salu'
            self.dst = R[0] if R else []
            self.src = sum(R[1:], [])
            if 'saveexec' in op:
                self.dst = self.dst + [('exec', 0)]
        else:
            raise ValueError('unknown instruction: ' + text)


_ins_cache = {}


def get_ins(text):
    i = _ins_cache.get(text)
    if i is None:
        i = Ins(text)
        _ins_cache[text] = i
    return i


class K:
    def __init__(self, name, plan=None):
        self.name = name
        self.plan = plan
        self.out = []
        self.cap = None
        self.suppress = False
        self.prefix = ()
        self.idx = 0
        self.events = []
        self.nvm = 0
        self.nlg = 0
        self.pend_vm = {}
        self.pend_lg = {}
        self.tags = {}
        self.trace = []
        self.smem_out = False
        self.uid = 0

    def _text(self, s):
        if self.cap is not None:
            self.cap.append(s)
        if not self.suppress:
            self.out.append(s)

    def label(self, l):
        self._text(l + ':')

    def comment(self, c):
        if not self.suppress:
            self.out.append('; ' + c)

    def newlabel(self, base):
        self.uid += 1
        return f'L_{self.name}_{base}_{self.uid}'

    def _site(self):
        s = (self.prefix, self.idx)
        self.idx += 1
        return s

    def _wait_event(self, site, need_vm, need_lg):
        if self.plan is None:
            self.events.append(('w', site, need_vm, need_lg, self.nvm, self.nlg))
        else:
            p = self.plan.get(site)
            if p is not None:
                vmN, lgN = p
                parts = []
                if vmN is not None:
                    parts.append(f'vmcnt({vmN})')
                if lgN is not None:
                    parts.append(f'lgkmcnt({lgN})')
                t = 's_waitcnt ' + ' '.join(parts)
                self._text('  ' + t)
                self.trace.append(get_ins(t))

    def op(self, text, tag=None, need=None):
        ins = get_ins(text)
        site = self._site()
        nv = -1
        nl = -1
        for r in ins.src + ins.dst:
            if r in self.pend_vm:
                nv = max(nv, self.pend_vm[r])
            if r in self.pend_lg:
                nl = max(nl, self.pend_lg[r])
        if need:
            for t in need:
                if t in self.tags:
                    c, s = self.tags[t]
                    if c == 'vm':
                        nv = max(nv, s)
                    else:
                        nl = max(nl, s)
                else:
                    raise KeyError(f'need of unknown tag {t}')
        if nv >= 0 or nl >= 0:
            self._wait_event(site, nv, nl)
        self._text('  ' + text)
        self.trace.append(ins)
        if ins.kind in ('vm_ld', 'vm_st', 'dma'):
            for r in ins.dst:
                self.pend_vm[r] = self.nvm
            if tag is not None:
                self.tags[tag] = ('vm', self.nvm)
            self.nvm += 1
        elif ins.kind in ('lds_ld', 'lds_st'):
            for r in ins.dst:
                self.pend_lg[r] = self.nlg
            if tag is not None:
                self.tags[tag] = ('lg', self.nlg)
            self.nlg += 1
        elif ins.kind == 'smem':
            self.smem_out = True
        return ins

    def wait_all(self, vm=True, lg=True):
        parts = []
        if vm:
            parts.append('vmcnt(0)')
        if lg:
            parts.append('lgkmcnt(0)')
            self.smem_out = False
        t = 's_waitcnt ' + ' '.join(parts)
        self._site()
        if self.plan is None:
            self.events.append(('f', self.nvm if vm else None, self.nlg if lg else None))
        self._text('  ' + t)
        self.trace.append(get_ins(t))

    def need(self, tags):
        site = self._site()
        nv = nl = -1
        for t in tags:
            c, s = self.tags[t]
            if c == 'vm':
                nv = max(nv, s)
            else:
                nl = max(nl, s)
        self._wait_event(site, nv, nl)

    def need_all_lg(self):
        site = self._site()
        if self.nlg > 0:
            self._wait_event(site, -1, self.nlg - 1)

    def need_all_vm(self):
        site = self._site()
        if self.nvm > 0:
            self._wait_event(site, self.nvm - 1, -1)

    def loop(self, n, cnt, base='loop'):
        lab = self.newlabel(base)
        self.op(f's_mov_b32 {cnt}, {n}')
        save_prefix, save_idx = self.prefix, self.idx
        save_cap, save_sup = self.cap, self.suppress
        first = None
        save_uid = self.uid
        self.label(lab)
        for it in range(n):
            self.prefix = save_prefix + (lab,)
            self.idx = 0
            self.cap = []
            self.uid = save_uid
            self.suppress = save_sup or it > 0
            yield it
            self.op(f's_sub_u32 {cnt}, {cnt}, 1')
            self.op(f's_cmp_lg_u32 {cnt}, 0')
            self.op(f's_cbranch_scc1 {lab}')
            if first is None:
                first = self.cap
            elif self.plan is not None and first != self.cap:
                for a, b in zip(first, self.cap):
                    if a != b:
                        raise AssertionError(f'loop {lab} body differs at iter {it}:\n{a}\n{b}')
                raise AssertionError(f'loop {lab} body length differs at iter {it}')
        self.cap = save_cap
        if self.cap is not None:
            self.cap.extend(first)
        self.suppress = save_sup
        self.prefix, self.idx = save_prefix, save_idx + 1

    def interleave(self, mfmas, fillers, start=0, per=None):
        n = len(mfmas)
        nf = len(fillers)
        slots = n - start
        fi = 0
        for i, m in enumerate(mfmas):
            self._do(m)
            if i >= start:
                if per is not None:
                    tgt = min(nf, per * (i - start + 1))
                else:
                    tgt = (nf * (i - start + 1) + slots - 1) // slots
                while fi < tgt:
                    self._do(fillers[fi])
                    fi += 1
        while fi < nf:
            self._do(fillers[fi])
            fi += 1

    def _do(self, x):
        if x is None:
            return
        if callable(x):
            x()
        elif isinstance(x, tuple):
            self.op(x[0], **x[1])
        else:
            self.op(x)


def make_plan(events):
    Nvm = {}
    Nlg = {}
    for e in events:
        if e[0] == 'w':
            _, site, nv, nl, iv, il = e
            if nv >= 0:
                n = iv - nv - 1
                Nvm[site] = min(Nvm.get(site, 63), n, 63)
            if nl >= 0:
                n = il - nl - 1
                Nlg[site] = min(Nlg.get(site, 15), n, 15)
    en_vm = set()
    en_lg = set()
    rv = -1
    rl = -1
    for e in events:
        if e[0] == 'f':
            if e[1] is not None:
                rv = e[1] - 1
            if e[2] is not None:
                rl = e[2] - 1
            continue
        _, site, nv, nl, iv, il = e
        if nv > rv:
            en_vm.add(site)
        if site in en_vm:
            rv = max(rv, iv - Nvm[site] - 1)
        if nl > rl:
            en_lg.add(site)
        if site in en_lg:
            rl = max(rl, il - Nlg[site] - 1)
    plan = {}
    for s in en_vm | en_lg:
        plan[s] = (Nvm[s] if s in en_vm else None, Nlg[s] if s in en_lg else None)
    return plan


def mfma_passes(op):
    if '32x32x16' in op or '32x32x8' in op:
        return 8
    if '16x16x32' in op or '16x16x16' in op:
        return 4
    raise ValueError(op)


def check_hazards(trace, name=''):
    errs = []
    pos = 0
    last_valu_w = {}
    last_trans_w = {}
    last_mfma_w = {}
    last_mfma_c = {}
    last_salu_m0 = -100
    last_valu_sgpr_w = {}
    last_store_data = {}
    need_d = {4: 8, 8: 12}
    need_c_war = {4: 3, 8: 7}
    need_overlap = {4: 6, 8: 10}

    def err(ins, msg):
        if len(errs) < 40:
            errs.append(f'[{name}] {msg}: {ins.text}')

    for ins in trace:
        def dist(p):
            return pos - p - 1
        if ins.kind == 'mfma':
            for r in ins.src:
                if r in last_valu_w and dist(last_valu_w[r]) < 2:
                    err(ins, f'VALU->MFMA src {r} dist {dist(last_valu_w[r])}')
            for r in ins.srcab:
                if r in last_mfma_w:
                    p, ps, _ = last_mfma_w[r]
                    if dist(p) < need_d[ps]:
                        err(ins, f'MFMA D->MFMA A/B {r} dist {dist(p)}')
            if ins.srcc:
                for r in ins.srcc:
                    if r in last_mfma_w:
                        p, ps, pi = last_mfma_w[r]
                        if pi.dst != ins.srcc and dist(p) < need_overlap[ps]:
                            err(ins, f'MFMA D->MFMA C overlap {r} dist {dist(p)}')
            for r in ins.dst:
                if r in last_mfma_w and r not in ins.srcc:
                    p, ps, pi = last_mfma_w[r]
                    if dist(p) < need_overlap[ps]:
                        err(ins, f'MFMA D->MFMA D WAW {r} dist {dist(p)}')
        elif ins.kind in ('valu', 'lds_ld', 'lds_st', 'vm_ld', 'vm_st', 'dma'):
            for r in ins.src + ins.dst:
                if r in last_mfma_w:
                    p, ps, _ = last_mfma_w[r]
                    if dist(p) < need_d[ps]:
                        err(ins, f'MFMA D->{ins.kind} {r} dist {dist(p)}')
            if ins.kind == 'valu':
                for r in ins.dst:
                    if r in last_mfma_c:
                        p, ps = last_mfma_c[r]
                        if dist(p) < need_c_war[ps]:
                            err(ins, f'MFMA C read->VALU write {r} dist {dist(p)}')
                    if r in last_store_data and dist(last_store_data[r]) < 2:
                        err(ins, f'store data WAR {r}')
                if not ins.op.startswith(TRANS):
                    for r in ins.src:
                        if r in last_trans_w and dist(last_trans_w[r]) < 1:
                            err(ins, f'trans->VALU {r}')
                isperm = ins.op.startswith('v_permlane')
                isdpp = 'dpp' in ins.text or 'row_' in ins.text or 'quad_perm' in ins.text
                if isperm or isdpp:
                    for r in ins.src:
                        if r in last_valu_w and dist(last_valu_w[r]) < 2:
                            err(ins, f'VALU->permlane/dpp {r} dist {dist(last_valu_w[r])}')
                if ins.op.startswith(('v_readfirstlane', 'v_readlane')):
                    for r in ins.src:
                        if r in last_valu_w and dist(last_valu_w[r]) < 1:
                            err(ins, f'VALU->readlane {r}')
                for r in ins.src:
                    if r in last_valu_sgpr_w and dist(last_valu_sgpr_w[r]) < 2:
                        err(ins, f'VALU sgpr write->VALU read {r}')
            else:
                for r in ins.src:
                    if r in last_trans_w and dist(last_trans_w[r]) < 1:
                        err(ins, f'trans->mem {r}')
            if ins.kind in ('vm_ld', 'vm_st', 'dma'):
                for r in ins.sregs_vmem:
                    if r in last_valu_sgpr_w and dist(last_valu_sgpr_w[r]) < 5:
                        err(ins, f'VALU sgpr write->VMEM {r}')
            if ins.kind == 'dma' and dist(last_salu_m0) < 1:
                err(ins, 'm0 write->DMA')
            if ins.kind in ('lds_ld', 'vm_ld'):
                for r in ins.dst:
                    if r in last_store_data and dist(last_store_data[r]) < 1:
                        err(ins, f'store data WAR(load) {r}')
        if ins.kind == 'mfma':
            ps = mfma_passes(ins.op)
            for r in ins.dst:
                last_mfma_w[r] = (pos, ps, ins)
                last_valu_w.pop(r, None)
            for r in ins.srcc:
                last_mfma_c[r] = (pos, ps)
        elif ins.kind == 'valu':
            for r in ins.dst:
                if r[0] in ('s', 'vcc'):
                    last_valu_sgpr_w[r] = pos
                else:
                    last_valu_w[r] = pos
                    last_mfma_w.pop(r, None)
                    if ins.op.startswith(TRANS):
                        last_trans_w[r] = pos
                    else:
                        last_trans_w.pop(r, None)
        elif ins.kind == 'salu':
            for r in ins.dst:
                if r == ('m0', 0):
                    last_salu_m0 = pos
                last_valu_sgpr_w.pop(r, None)
        elif ins.kind in ('lds_ld', 'vm_ld'):
            for r in ins.dst:
                last_mfma_w.pop(r, None)
                last_valu_w.pop(r, None)
                last_trans_w.pop(r, None)
        if ins.storedata:
            for r in ins.storedata:
                last_store_data[r] = pos
        pos += ins.nstates
    return errs


def build_kernel(name, genfn, vgpr=512, sgpr=102, accum=256):
    fns = genfn if isinstance(genfn, (list, tuple)) else [genfn]
    outl = []
    trace = []
    for n, fn in enumerate(fns):
        k1 = K(f'{name}{n}', None)
        fn(k1)
        plan = make_plan(k1.events)
        k2 = K(f'{name}{n}', plan)
        fn(k2)
        errs = check_hazards(k2.trace, name)
        if errs:
            raise AssertionError('hazards:\n' + '\n'.join(errs))
        outl += k2.out
        trace += k2.trace
    body = '\n'.join(outl)
    text = f"""
.globl {name}
.p2align 8
.type {name},@function
{name}:
{body}
"""
    desc = f"""
.p2align 6
.amdhsa_kernel {name}
  .amdhsa_next_free_vgpr {vgpr}
  .amdhsa_next_free_sgpr {sgpr}
  .amdhsa_accum_offset {accum}
  .amdhsa_group_segment_fixed_size 0
  .amdhsa_kernarg_size 104
  .amdhsa_user_sgpr_count 2
  .amdhsa_user_sgpr_kernarg_segment_ptr 1
  .amdhsa_system_sgpr_workgroup_id_x 1
.end_amdhsa_kernel
"""
    stats = {}
    for ins in trace:
        stats[ins.kind] = stats.get(ins.kind, 0) + 1
    return text, desc, stats, len(outl)
```

```python
import sys, struct, math
from asmgen import K, build_kernel, make_plan, check_hazards

S, D, HQ, HKV, DH, SK, W, F = 2048, 1024, 32, 4, 128, 2048, 512, 3584
A_X, A_K, A_V, A_WQ, A_WO, A_BX, A_W1, A_B1, A_W2, A_B2, A_OUT, A_DBG, A_WS = [8 * i for i in range(13)]
MB = 1 << 20
WS_XN = 0
WS_H = 4 * MB
WS_O = 8 * MB
WS_U = 24 * MB
WS_G = 32 * MB
WS_FLAG = 40 * MB


def f2u(x):
    return struct.unpack('<I', struct.pack('<f', x))[0]


def hx(x):
    return f'0x{f2u(x):08x}'


QSCALE = math.log2(math.e) / math.sqrt(DH)


def srd(k, d, lo, hi, nrec):
    k.op(f's_mov_b32 s{d}, {lo}')
    k.op(f's_and_b32 s{d+1}, {hi}, 0xffff')
    k.op(f's_mov_b32 s{d+2}, {nrec}')
    k.op(f's_mov_b32 s{d+3}, 0x00020000')


def srd_off(k, d, plo, off, nrec):
    k.op(f's_add_u32 s{d}, s{plo}, {off}')
    k.op(f's_addc_u32 s{d+1}, s{plo+1}, 0')
    k.op(f's_and_b32 s{d+1}, s{d+1}, 0xffff')
    k.op(f's_mov_b32 s{d+2}, {nrec}')
    k.op(f's_mov_b32 s{d+3}, 0x00020000')


def wave_allreduce_add(k, regs, tmps):
    pats = ['quad_perm:[1,0,3,2]', 'quad_perm:[2,3,0,1]', 'row_half_mirror', 'row_mirror']
    for p in pats:
        k.op('s_nop 1')
        for r in regs:
            k.op(f'v_add_f32_dpp v{r}, v{r}, v{r} {p} row_mask:0xf bank_mask:0xf')
    for sw in ('v_permlane16_swap_b32', 'v_permlane32_swap_b32'):
        for r, t in zip(regs, tmps):
            k.op(f'v_mov_b32 v{t}, v{r}')
        k.op('s_nop 1')
        for r, t in zip(regs, tmps):
            k.op(f'{sw} v{r}, v{t}')
        k.op('s_nop 0')
        for r, t in zip(regs, tmps):
            k.op(f'v_add_f32 v{r}, v{r}, v{t}')


def round_bf16(k, dst, src):
    k.op(f'v_cvt_pk_bf16_f32 v{dst}, v{src}, v{src}')
    k.op(f'v_and_b32 v{dst}, 0xffff0000, v{dst}')


def gen_ln(k):
    PITCH = 2048 + 64
    LDS_XN = 0
    LDS_H = 8 * PITCH
    k.op('s_cmp_ge_u32 s2, 256')
    k.op('s_cbranch_scc1 L_ln_end')
    stamp(k, 0)
    k.op(f's_load_dwordx2 s[4:5], s[0:1], {A_X}')
    k.op(f's_load_dwordx2 s[6:7], s[0:1], {A_WS}')
    k.op('v_lshrrev_b32 v1, 6, v0')
    k.op('v_and_b32 v2, 63, v0')
    k.op('v_readfirstlane_b32 s16, v1')
    k.op('v_lshlrev_b32 v3, 4, v2')
    k.wait_all(vm=False)
    srd(k, 8, 's4', 's5', S * D * 2)
    srd(k, 12, 's6', 's7', 48 * MB)
    k.op('s_lshl_b32 s17, s2, 3')
    k.op('s_lshl_b32 s18, s16, 1')
    k.op('s_add_u32 s17, s17, s18')
    k.op('s_lshl_b32 s17, s17, 11')
    for r in range(2):
        k.op(f'buffer_load_dwordx4 v[{8+8*r}:{11+8*r}], v3, s[8:11], s17 offen offset:{r*2048}')
        k.op(f'buffer_load_dwordx4 v[{12+8*r}:{15+8*r}], v3, s[8:11], s17 offen offset:{r*2048+1024}')
    k.op('s_cmp_lg_u32 s2, 0')
    k.op('s_cbranch_scc1 L_ln_noflag')
    k.op('v_mov_b32 v4, 0')
    k.op('v_mov_b32 v5, 0')
    k.op('v_mov_b32 v6, 0')
    k.op('v_mov_b32 v7, 0')
    k.op('v_lshlrev_b32 v24, 6, v0')
    k.op(f's_mov_b32 s19, {WS_FLAG}')
    for j in range(4):
        k.op(f'buffer_store_dwordx4 v[4:7], v24, s[12:15], s19 offen offset:{j*16}')
    k.label('L_ln_noflag')
    k.wait_all()
    stamp(k, 1)
    X = [[32 + 16 * r + i for i in range(16)] for r in range(2)]
    T = [[64 + 16 * r + i for i in range(16)] for r in range(2)]
    for r in range(2):
        for j in range(8):
            k.op(f'v_lshlrev_b32 v{X[r][2*j]}, 16, v{8+8*r+j}')
            k.op(f'v_and_b32 v{X[r][2*j+1]}, 0xffff0000, v{8+8*r+j}')
    SUM = [96, 97]
    TMP = [98, 99]
    MEANB = [100, 101]
    SD = [102, 103]
    RC = [104, 105]
    k.op(f's_mov_b32 s20, {hx(1.0/1024)}')
    k.op(f's_mov_b32 s21, {hx(1e-5)}')
    k.op(f's_mov_b32 s22, {hx(QSCALE)}')

    def layernorm(final):
        for r in range(2):
            k.op(f'v_add_f32 v{SUM[r]}, v{X[r][0]}, v{X[r][1]}')
        for i in range(2, 16):
            for r in range(2):
                k.op(f'v_add_f32 v{SUM[r]}, v{SUM[r]}, v{X[r][i]}')
        wave_allreduce_add(k, SUM, TMP)
        for r in range(2):
            k.op(f'v_mul_f32 v{SUM[r]}, s20, v{SUM[r]}')
        for r in range(2):
            round_bf16(k, MEANB[r], SUM[r])
        for i in range(16):
            for r in range(2):
                k.op(f'v_sub_f32 v{T[r][i]}, v{X[r][i]}, v{SUM[r]}')
        for r in range(2):
            k.op(f'v_mul_f32 v{SUM[r]}, v{T[r][0]}, v{T[r][0]}')
        for i in range(1, 16):
            for r in range(2):
                k.op(f'v_fmac_f32 v{SUM[r]}, v{T[r][i]}, v{T[r][i]}')
        wave_allreduce_add(k, SUM, TMP)
        for r in range(2):
            k.op(f'v_mul_f32 v{SUM[r]}, s20, v{SUM[r]}')
        for r in range(2):
            round_bf16(k, SD[r], SUM[r])
        for r in range(2):
            k.op(f'v_add_f32 v{SD[r]}, s21, v{SD[r]}')
        for r in range(2):
            round_bf16(k, SD[r], SD[r])
        for r in range(2):
            k.op(f'v_sqrt_f32 v{SD[r]}, v{SD[r]}')
        k.op('s_nop 0')
        for r in range(2):
            round_bf16(k, SD[r], SD[r])
        for r in range(2):
            k.op(f'v_rcp_f32 v{RC[r]}, v{SD[r]}')
        for j in range(8):
            for r in range(2):
                a, b = X[r][2 * j], X[r][2 * j + 1]
                k.op(f'v_sub_f32 v{a}, v{a}, v{MEANB[r]}')
                k.op(f'v_sub_f32 v{b}, v{b}, v{MEANB[r]}')
                k.op(f'v_cvt_pk_bf16_f32 v{b}, v{a}, v{b}')
                k.op(f'v_lshlrev_b32 v{a}, 16, v{b}')
                k.op(f'v_and_b32 v{b}, 0xffff0000, v{b}')
        for i in range(16):
            for r in range(2):
                x, t = X[r][i], T[r][i]
                k.op(f'v_mul_f32 v{t}, v{x}, v{RC[r]}')
                k.op(f'v_fma_f32 v{x}, -v{t}, v{SD[r]}, v{x}')
                k.op(f'v_fma_f32 v{t}, v{x}, v{RC[r]}, v{t}')
        for j in range(8):
            for r in range(2):
                p = 8 + 8 * r + j
                k.op(f'v_cvt_pk_bf16_f32 v{p}, v{T[r][2*j]}, v{T[r][2*j+1]}')
                if not final:
                    k.op(f'v_lshlrev_b32 v{X[r][2*j]}, 16, v{p}')
                    k.op(f'v_and_b32 v{X[r][2*j+1]}, 0xffff0000, v{p}')

    layernorm(False)
    k.op(f's_mul_i32 s18, s16, {2*PITCH}')
    k.op('v_add_u32 v24, s18, v3')
    for r in range(2):
        for j in range(8):
            k.op(f'v_mul_f32 v{T[r][2*j]}, s22, v{X[r][2*j]}')
            k.op(f'v_mul_f32 v{T[r][2*j+1]}, s22, v{X[r][2*j+1]}')
            k.op(f'v_cvt_pk_bf16_f32 v{112+8*r+j}, v{T[r][2*j]}, v{T[r][2*j+1]}')
        k.op(f'ds_write_b128 v24, v[{112+8*r}:{115+8*r}] offset:{LDS_XN + r*PITCH}')
        k.op(f'ds_write_b128 v24, v[{116+8*r}:{119+8*r}] offset:{LDS_XN + r*PITCH + 1024}')
    layernorm(True)
    for r in range(2):
        k.op(f'ds_write_b128 v24, v[{8+8*r}:{11+8*r}] offset:{LDS_H + r*PITCH}')
        k.op(f'ds_write_b128 v24, v[{12+8*r}:{15+8*r}] offset:{LDS_H + r*PITCH + 1024}')
    k.op('v_and_b32 v25, 7, v2')
    k.op(f'v_mul_u32_u24 v26, {PITCH}, v25')
    k.op('v_lshrrev_b32 v27, 3, v2')
    k.op('v_lshl_add_u32 v26, v27, 4, v26')
    k.op('s_lshl_b32 s18, s16, 9')
    k.op('v_add_u32 v26, s18, v26')
    k.op('v_lshlrev_b32 v28, 9, v27')
    k.op('v_lshl_add_u32 v28, v25, 4, v28')
    k.op('s_lshr_b32 s18, s2, 2')
    k.op('s_lshl_b32 s18, s18, 16')
    k.op('s_and_b32 s19, s2, 3')
    k.op('s_lshl_b32 s19, s19, 7')
    k.op('s_add_u32 s18, s18, s19')
    k.op('s_lshl_b32 s19, s16, 14')
    k.op('s_add_u32 s18, s18, s19')
    k.op('v_bfe_u32 v29, v2, 2, 2')
    k.op(f'v_mul_u32_u24 v29, {PITCH}, v29')
    k.op('v_lshrrev_b32 v30, 4, v2')
    k.op('v_lshl_add_u32 v29, v30, 5, v29')
    k.op('v_and_b32 v30, 3, v2')
    k.op('v_lshl_add_u32 v29, v30, 3, v29')
    k.op('s_lshl_b32 s19, s16, 9')
    k.op('v_add_u32 v29, s19, v29')
    k.op('v_lshrrev_b32 v30, 5, v2')
    k.op('v_lshlrev_b32 v30, 17, v30')
    k.op('v_and_b32 v31, 31, v2')
    k.op('v_lshl_add_u32 v30, v31, 4, v30')
    k.op('s_lshl_b32 s19, s2, 9')
    k.op(f's_add_u32 s19, s19, {WS_H}')
    k.op('s_lshl_b32 s23, s16, 20')
    k.op('s_add_u32 s19, s19, s23')
    k.wait_all(vm=False)
    stamp(k, 2)
    k.op('s_barrier')
    for ii in range(4):
        k.op(f'ds_read_b128 v[{32+4*ii}:{35+4*ii}], v26 offset:{LDS_XN + ii*128}')
    for ii in range(4):
        k.op(f'ds_read_b64_tr_b16 v[{48+4*ii}:{49+4*ii}], v29 offset:{LDS_H + ii*128}')
        k.op(f'ds_read_b64_tr_b16 v[{50+4*ii}:{51+4*ii}], v29 offset:{LDS_H + ii*128 + 4*PITCH}')
    for ii in range(4):
        k.op(f'buffer_store_dwordx4 v[{32+4*ii}:{35+4*ii}], v28, s[12:15], s18 offen')
        k.op('s_add_u32 s18, s18, 4096')
    for ii in range(4):
        k.op(f'buffer_store_dwordx4 v[{48+4*ii}:{51+4*ii}], v30, s[12:15], s19 offen')
        k.op('s_add_u32 s19, s19, 262144')
    k.wait_all()
    stamp(k, 3)
    stamp_dump(k, 4, 0)
    k.label('L_ln_end')
    k.op('s_endpgm')


class G:
    SW = 8
    SX = 12
    WAVE = 's16'
    SOW = 's17'
    SOX = 's18'
    M0B = 's19'
    CNT = 's20'
    VLANE = 2
    VL16 = 3
    VD = [4, 5, 6, 7]
    VA = [8, 9, 10, 11]
    VA2 = [12, 13, 14, 15]
    ACC = 64
    WF = 0
    XF = 32


def gemm_setup_addrs(k, ldw, corder, g=G, colperm=False):
    L = g.VLANE
    k.op(f'v_and_b32 v{L}, 63, v0')
    k.op(f'v_lshlrev_b32 v{g.VL16}, 4, v{L}')
    t0, t1, t2 = 20, 21, 22
    k.op(f'v_lshrrev_b32 v{t0}, 4, v{L}')
    k.op(f'v_bfe_u32 v{t1}, v{L}, 2, 2')
    k.op(f'v_xor_b32 v{t1}, v{t1}, v{t0}')
    k.op(f'v_lshlrev_b32 v{t1}, 6, v{t1}')
    k.op(f'v_and_b32 v{t2}, 3, v{L}')
    k.op(f'v_lshl_add_u32 v{t1}, v{t2}, 4, v{t1}')
    k.op(f's_mov_b32 s21, {ldw}')
    k.op(f'v_mul_lo_u32 v{t0}, v{t0}, s21')
    k.op(f'v_add_u32 v{t1}, v{t1}, v{t0}')
    k.op(f's_mul_i32 s21, {g.WAVE}, {16*ldw}')
    k.op(f'v_add_u32 v{g.VD[0]}, s21, v{t1}')
    for q in range(1, 4):
        k.op(f'v_add_u32 v{g.VD[q]}, {q*(4*ldw-1024)}, v{g.VD[0]}')
    k.op(f's_lshl_b32 {g.M0B}, {g.WAVE}, 12')
    k.op(f'v_bfe_u32 v{t0}, v{L}, 2, 2')
    k.op(f'v_lshrrev_b32 v{t1}, 5, v{L}')
    k.op(f'v_lshl_add_u32 v{t1}, v{t1}, {2 if corder else 3}, v{t0}')
    k.op(f'v_lshlrev_b32 v{t1}, 8, v{t1}')
    k.op(f'v_bfe_u32 v{t2}, v{L}, 4, 1')
    k.op(f'v_lshl_add_u32 v{t1}, v{t2}, 5, v{t1}')
    if colperm:
        k.op(f'v_and_b32 v{t2}, 1, v{L}')
        k.op(f'v_lshl_add_u32 v{t1}, v{t2}, 4, v{t1}')
        k.op(f'v_bfe_u32 v{t2}, v{L}, 1, 1')
        k.op(f'v_lshl_add_u32 v{t1}, v{t2}, 3, v{t1}')
    else:
        k.op(f'v_and_b32 v{t2}, 3, v{L}')
        k.op(f'v_lshl_add_u32 v{t1}, v{t2}, 3, v{t1}')
    for mb in range(4):
        k.op(f'v_xor_b32 v{t2}, {mb}, v{t0}')
        k.op(f'v_lshl_add_u32 v{g.VA[mb]}, v{t2}, 6, v{t1}')
        if g.VA2:
            k.op(f'v_add_u32 v{g.VA2[mb]}, 0x10000, v{g.VA[mb]}')


def gemm128(k, ldw, nstages, corder, w_is_a, g=G, L=6, DX=16, P=6, init_acc=None):
    R = 8
    j2off = 2048 if corder else 1024

    def dma_stage_ops(st):
        slot = st % R
        ops = [f's_add_u32 m0, {g.M0B}, {slot*16384}']
        for q in range(4):
            ops.append((f'buffer_load_dwordx4 v{g.VD[q]}, s[{g.SW}:{g.SW+3}], {g.SOW} offen offset:{q*1024} lds',
                        dict(tag=('dma', st, q))))
        ops.append(f's_add_u32 {g.SOW}, {g.SOW}, {64*ldw}')
        return ops

    def xload(t):
        r = g.XF + 4 * (t % DX)
        ops = [f'buffer_load_dwordx4 a[{r}:{r+3}], v{g.VL16}, s[{g.SX}:{g.SX+3}], {g.SOX} offen offset:{(t%4)*1024}']
        if t % 4 == 3:
            ops.append(f's_add_u32 {g.SOX}, {g.SOX}, 4096')
        return ops

    def wread(f):
        t, mb = f // 4, f % 4
        st, kk = t // 4, t % 4
        slot = st % R
        va = (g.VA if slot < 4 else g.VA2)[mb]
        off = (slot % 4) * 16384 + kk * 4096
        r = g.WF + 4 * (f % 8)
        return [f'ds_read_b64_tr_b16 a[{r}:{r+1}], v{va} offset:{off}',
                f'ds_read_b64_tr_b16 a[{r+2}:{r+3}], v{va} offset:{off+j2off}']

    def mfma(f):
        t, mb = f // 4, f % 4
        wr = g.WF + 4 * (f % 8)
        xr = g.XF + 4 * (t % DX)
        acc = g.ACC + 16 * mb
        wa, xa = f'a[{wr}:{wr+3}]', f'a[{xr}:{xr+3}]'
        a, b = (wa, xa) if w_is_a else (xa, wa)
        return f'v_mfma_f32_32x32x16_bf16 v[{acc}:{acc+15}], {a}, {b}, v[{acc}:{acc+15}]'

    for st in range(P + 1):
        for o in dma_stage_ops(st):
            k._do(o)
            if isinstance(o, str) and 'm0' in o:
                k.op('s_nop 0')
        if 4 * st < DX:
            for t in range(4 * st, 4 * st + 4):
                for o in xload(t):
                    k._do(o)
    if init_acc is None:
        for i in range(64):
            k.op(f'v_mov_b32 v{g.ACC+i}, 0')
    else:
        init_acc()
    k.need([('dma', 0, q) for q in range(4)])
    k.op('s_barrier')
    for f in range(L):
        for o in wread(f):
            k._do(o)
    stamp(k, 1)
    assert nstages % R == 0
    for it in k.loop(nstages // R, g.CNT, 'gemm'):
        pending = []
        for fb in range(128):
            f = it * 128 + fb
            k.op(mfma(f))
            fn = f + L
            if fn % 16 == 0:
                st = fn // 16
                k.need([('dma', st, q) for q in range(4)])
                k.op('s_barrier')
                pending += dma_stage_ops(st + P)
            for o in wread(fn):
                k._do(o)
            if f % 4 == 3:
                for o in xload(f // 4 + DX):
                    k._do(o)
            if pending:
                o = pending.pop(0)
                k._do(o)
                if pending and isinstance(pending[0], str):
                    k._do(pending.pop(0))
        assert not pending
    k.op('s_nop 7')
    k.op('s_nop 7')


STAMPS = True
STAMP_BASE = 60


def stamp(k, i):
    if not STAMPS:
        return
    r = STAMP_BASE + 4 * i
    k.op(f's_memtime s[{r}:{r+1}]')
    k.op(f's_memrealtime s[{r+2}:{r+3}]')


def stamp_dump(k, n, kidx=0):
    if not STAMPS:
        return
    lab = k.newlabel('nostamp')
    k.op(f's_load_dwordx2 s[56:57], s[0:1], {A_WS}')
    k.wait_all()
    k.op('s_cmp_lg_u32 s16, 0')
    k.op(f's_cbranch_scc1 {lab}')
    srd(k, 52, 's56', 's57', 128 * MB)
    k.op('s_lshl_b32 s56, s2, 7')
    k.op(f's_add_u32 s56, s56, {64*MB + kidx*65536}')
    k.op('v_mov_b32 v1, 0')
    for i in range(n):
        r = STAMP_BASE + 4 * i
        k.op(f'v_mov_b32 v2, s{r}')
        k.op(f'v_mov_b32 v3, s{r+2}')
        k.op(f'buffer_store_dwordx2 v[2:3], v1, s[52:55], s56 offen offset:{8*i}')
    k.wait_all()
    k.label(lab)


def get_wave(k):
    k.op('v_lshrrev_b32 v1, 6, v0')
    k.op('s_nop 0')
    k.op('v_readfirstlane_b32 s16, v1')


GELU_C0 = -2.0 * math.log2(math.e) * math.sqrt(2.0 / math.pi)
GELU_C1 = GELU_C0 * 0.044715


def gen_mlp1(k):
    g = G
    k.op('s_cmp_ge_u32 s2, 224')
    k.op('s_cbranch_scc1 L_mlp1_end')
    stamp(k, 0)
    k.op(f's_load_dwordx2 s[4:5], s[0:1], {A_W1}')
    k.op(f's_load_dwordx2 s[6:7], s[0:1], {A_WS}')
    k.op(f's_load_dwordx2 s[24:25], s[0:1], {A_B1}')
    get_wave(k)
    k.op('s_and_b32 s22, s2, 1')
    k.op('s_lshl_b32 s22, s22, 2')
    k.op('s_bfe_u32 s23, s2, 0x20003')
    k.op('s_add_u32 s22, s22, s23')
    k.op('s_bfe_u32 s23, s2, 0x20001')
    k.op('s_mul_i32 s23, s23, 7')
    k.op('s_lshr_b32 s26, s2, 5')
    k.op('s_add_u32 s23, s23, s26')
    gemm_setup_addrs(k, F * 2, False)
    k.wait_all(vm=False)
    k.op('s_lshl_b32 s26, s23, 8')
    k.op(f's_sub_u32 s27, {S*F*2}, s26')
    srd_off(k, g.SW, 4, 's26', 's27')
    k.op('s_lshl_b32 s26, s22, 2')
    k.op('s_add_u32 s26, s26, s16')
    k.op('s_lshl_b32 s27, s26, 17')
    k.op(f's_add_u32 s27, s27, {WS_H}')
    srd_off(k, g.SX, 6, 's27', 131072)
    k.op(f's_mul_i32 s27, s26, {224*1024}')
    k.op(f's_add_u32 s27, s27, {WS_U}')
    srd_off(k, 28, 6, 's27', 224 * 1024)
    srd(k, 32, 's24', 's25', F * 2)
    k.op(f's_mov_b32 {g.SOW}, 0')
    k.op(f's_mov_b32 {g.SOX}, 0')
    k.op(f'v_lshrrev_b32 v16, 5, v{g.VLANE}')
    k.op('v_lshlrev_b32 v16, 3, v16')
    k.op('s_lshl_b32 s26, s23, 8')
    for mb in range(4):
        for gq in range(4):
            r = 128 + (mb * 4 + gq) * 2
            k.op(f'buffer_load_dwordx2 v[{r}:{r+1}], v16, s[32:35], s26 offen offset:{mb*64+gq*16}')
    gemm128(k, F * 2, S // 64, False, True)
    stamp(k, 2)
    k.op(f's_mov_b32 s22, {hx(GELU_C0)}')
    k.op(f's_mov_b32 s24, {hx(GELU_C1)}')
    k.op('v_mov_b32 v17, s22')
    k.op('s_lshl_b32 s26, s23, 13')
    for mb in range(4):
        for half in range(2):
            P = 160 + ((mb * 2 + half) % 4) * 4
            for jj in range(4):
                i0 = half * 8 + jj * 2
                a, b = g.ACC + 16 * mb + i0, g.ACC + 16 * mb + i0 + 1
                br = 128 + (mb * 4 + (i0 >> 2)) * 2 + ((i0 >> 1) & 1)
                t0, t1, t2, t3 = 24 + (jj % 2) * 4, 25 + (jj % 2) * 4, 26 + (jj % 2) * 4, 27 + (jj % 2) * 4
                k.op(f'v_cvt_pk_bf16_f32 v{b}, v{a}, v{b}')
                k.op(f'v_lshlrev_b32 v{t0}, 16, v{br}')
                k.op(f'v_and_b32 v{t1}, 0xffff0000, v{br}')
                k.op(f'v_lshlrev_b32 v{a}, 16, v{b}')
                k.op(f'v_and_b32 v{b}, 0xffff0000, v{b}')
                k.op(f'v_add_f32 v{a}, v{a}, v{t0}')
                k.op(f'v_add_f32 v{b}, v{b}, v{t1}')
                k.op(f'v_cvt_pk_bf16_f32 v{b}, v{a}, v{b}')
                k.op(f'v_lshlrev_b32 v{a}, 16, v{b}')
                k.op(f'v_and_b32 v{b}, 0xffff0000, v{b}')
                k.op(f'v_mul_f32 v{t0}, v{a}, v{a}')
                k.op(f'v_mul_f32 v{t1}, v{b}, v{b}')
                k.op(f'v_fma_f32 v{t0}, v{t0}, s24, v17')
                k.op(f'v_fma_f32 v{t1}, v{t1}, s24, v17')
                k.op(f'v_mul_f32 v{t0}, v{t0}, v{a}')
                k.op(f'v_mul_f32 v{t1}, v{t1}, v{b}')
                k.op(f'v_exp_f32 v{t0}, v{t0}')
                k.op(f'v_exp_f32 v{t1}, v{t1}')
                k.op(f'v_add_f32 v{t0}, 1.0, v{t0}')
                k.op(f'v_add_f32 v{t1}, 1.0, v{t1}')
                k.op(f'v_rcp_f32 v{t0}, v{t0}')
                k.op(f'v_rcp_f32 v{t1}, v{t1}')
                k.op(f'v_mul_f32 v{a}, v{a}, v{t0}')
                k.op(f'v_mul_f32 v{b}, v{b}, v{t1}')
                k.op(f'v_cvt_pk_bf16_f32 v{P+jj}, v{a}, v{b}')
            ks = mb * 2 + half
            k.op(f'buffer_store_dwordx4 v[{P}:{P+3}], v{g.VL16}, s[28:31], s26 offen offset:{(ks%4)*1024}')
            if ks % 4 == 3:
                k.op('s_add_u32 s26, s26, 4096')
    stamp(k, 3)
    k.wait_all()
    stamp(k, 4)
    stamp_dump(k, 5, 1)
    k.label('L_mlp1_end')
    k.op('s_endpgm')


class GQ:
    SW = 8
    WAVE = 's16'
    SOW = 's17'
    SOX = 's18'
    M0B = 's19'
    CNT = 's20'
    VLANE = 2
    VL16 = 3
    VD = [4, 5, 6, 7]
    VA = [8, 9, 10, 11]
    VA2 = None


THR = 16.0


def gen_qattn(k):
    g = GQ
    SX = [12, 24]
    SKV = 28
    SO = 32
    SOKV = 's36'
    VD2 = [12, 13, 14, 15]
    VK = list(range(16, 24))
    VV = [24, 25, 26, 27]
    LS = [28, 29]
    TM = [30, 31, 32]
    KVB = 65536
    ACC = 128
    WF = 192
    XF = 0
    DX = 8
    L = 4
    ldw = HQ * DH * 2
    k.op('s_cmp_ge_u32 s2, 256')
    k.op('s_cbranch_scc1 L_qattn_end')
    stamp(k, 0)
    k.op(f's_load_dwordx2 s[4:5], s[0:1], {A_WQ}')
    k.op(f's_load_dwordx2 s[6:7], s[0:1], {A_WS}')
    k.op(f's_load_dwordx4 s[40:43], s[0:1], {A_K}')
    get_wave(k)
    k.op('s_bfe_u32 s22, s2, 0x20001')
    k.op('s_bfe_u32 s23, s2, 0x30003')
    k.op('s_lshl_b32 s44, s22, 3')
    k.op('s_add_u32 s44, s44, s23')
    k.op('s_and_b32 s23, s2, 1')
    k.op('s_lshl_b32 s23, s23, 2')
    k.op('s_lshr_b32 s45, s2, 6')
    k.op('s_add_u32 s45, s45, s23')
    gemm_setup_addrs(k, ldw, False, g=g, colperm=True)
    Ln = g.VLANE
    t0, t1, t2 = 33, 34, 35
    k.op(f'v_lshrrev_b32 v{t0}, 4, v{Ln}')
    k.op('s_and_b32 s21, s16, 1')
    k.op('s_lshl_b32 s21, s21, 12')
    k.op(f'v_lshlrev_b32 v{t2}, 8, v{t0}')
    k.op(f'v_add_u32 v{t2}, s21, v{t2}')
    k.op('s_cmp_ge_u32 s16, 2')
    k.op('s_cbranch_scc1 L_qattn_vw')
    k.op(f'v_and_b32 v{t1}, 15, v{Ln}')
    k.op(f'v_xor_b32 v{t1}, v{t1}, v{t0}')
    k.op(f'v_lshlrev_b32 v{t1}, 4, v{t1}')
    for q in range(4):
        k.op(f'v_xor_b32 v{VD2[q]}, {q*64}, v{t1}')
        k.op(f'v_add_u32 v{VD2[q]}, v{VD2[q]}, v{t2}')
        k.op(f'v_add_u32 v{VD2[q]}, {1536*256}, v{VD2[q]}')
    k.op('s_branch L_qattn_vw_done')
    k.label('L_qattn_vw')
    k.op(f'v_bfe_u32 v{t1}, v{Ln}, 2, 2')
    k.op(f'v_xor_b32 v{t1}, v{t1}, v{t0}')
    k.op(f'v_lshlrev_b32 v{t1}, 6, v{t1}')
    k.op(f'v_and_b32 v{t0}, 3, v{Ln}')
    k.op(f'v_lshl_add_u32 v{t1}, v{t0}, 4, v{t1}')
    for q in range(4):
        k.op(f'v_add_u32 v{VD2[q]}, v{t1}, v{t2}')
        k.op(f'v_add_u32 v{VD2[q]}, {(1536-32)*256}, v{VD2[q]}')
    k.label('L_qattn_vw_done')
    k.op(f'v_and_b32 v{t0}, 31, v{Ln}')
    k.op(f'v_lshlrev_b32 v{t0}, 8, v{t0}')
    k.op(f'v_add_u32 v{t0}, {KVB}, v{t0}')
    k.op(f'v_and_b32 v{t1}, 15, v{Ln}')
    k.op(f'v_lshrrev_b32 v{t2}, 5, v{Ln}')
    k.op(f'v_xor_b32 v{t1}, v{t1}, v{t2}')
    for ks in range(8):
        k.op(f'v_xor_b32 v{t2}, {2*ks}, v{t1}')
        k.op(f'v_lshl_add_u32 v{VK[ks]}, v{t2}, 4, v{t0}')
    k.op(f'v_bfe_u32 v{t0}, v{Ln}, 2, 2')
    k.op(f'v_lshrrev_b32 v{t1}, 5, v{Ln}')
    k.op(f'v_lshl_add_u32 v{t1}, v{t1}, 2, v{t0}')
    k.op(f'v_lshlrev_b32 v{t1}, 8, v{t1}')
    k.op(f'v_bfe_u32 v{t2}, v{Ln}, 4, 1')
    k.op(f'v_lshl_add_u32 v{t1}, v{t2}, 5, v{t1}')
    k.op(f'v_and_b32 v{t2}, 3, v{Ln}')
    k.op(f'v_lshl_add_u32 v{t1}, v{t2}, 3, v{t1}')
    k.op(f'v_add_u32 v{t1}, {KVB + 8192}, v{t1}')
    for mb in range(4):
        k.op(f'v_xor_b32 v{t2}, {mb}, v{t0}')
        k.op(f'v_lshl_add_u32 v{VV[mb]}, v{t2}, 6, v{t1}')
    k.wait_all(vm=False)
    k.op('s_lshl_b32 s46, s44, 8')
    k.op(f's_sub_u32 s47, {D*ldw}, s46')
    srd_off(k, g.SW, 4, 's46', 's47')
    k.op('s_lshl_b32 s46, s45, 3')
    k.op('s_lshl_b32 s47, s16, 1')
    k.op('s_add_u32 s46, s46, s47')
    k.op('s_lshl_b32 s47, s46, 16')
    srd_off(k, SX[0], 6, 's47', 65536)
    k.op('s_add_u32 s47, s47, 65536')
    srd_off(k, SX[1], 6, 's47', 65536)
    k.op('s_lshl_b32 s47, s46, 18')
    k.op(f's_add_u32 s47, s47, {WS_O}')
    srd_off(k, SO, 6, 's47', 2 * 262144)
    k.op('s_cmp_ge_u32 s16, 2')
    k.op('s_cselect_b32 s40, s42, s40')
    k.op('s_cselect_b32 s41, s43, s41')
    k.op('s_lshl_b32 s46, s22, 19')
    k.op(f's_sub_u32 s47, {HKV*SK*DH*2}, s46')
    srd_off(k, SKV, 40, 's46', 's47')
    k.op(f's_mov_b32 {g.SOW}, 0')
    k.op(f's_mov_b32 {g.SOX}, 0')
    k.op(f's_mov_b32 {SOKV}, 0')
    k.op(f's_mov_b32 s48, {hx(THR)}')

    R = 4

    def dma_w(st):
        ops = [f's_add_u32 m0, {g.M0B}, {(st % R)*16384}']
        for q in range(4):
            ops.append((f'buffer_load_dwordx4 v{g.VD[q]}, s[{g.SW}:{g.SW+3}], {g.SOW} offen offset:{q*1024} lds',
                        dict(tag=('dma', st, q))))
        ops.append(f's_add_u32 {g.SOW}, {g.SOW}, {64*ldw}')
        return ops

    def dma_kv(sp):
        ops = [f's_add_u32 m0, {g.M0B}, {KVB + (sp % 4)*16384}']
        for q in range(4):
            ops.append((f'buffer_load_dwordx4 v{VD2[q]}, s[{SKV}:{SKV+3}], {SOKV} offen offset:{q*1024} lds',
                        dict(tag=('kv', sp, q))))
        ops.append(f's_add_u32 {SOKV}, {SOKV}, 8192')
        return ops

    def xload(t):
        ops = []
        for qb in range(2):
            r = XF + 8 * (t % DX) + 4 * qb
            ops.append(f'buffer_load_dwordx4 a[{r}:{r+3}], v{g.VL16}, s[{SX[qb]}:{SX[qb]+3}], {g.SOX} offen offset:{(t%4)*1024}')
        if t % 4 == 3:
            ops.append(f's_add_u32 {g.SOX}, {g.SOX}, 4096')
        return ops

    def wread(f):
        t, mb = f // 4, f % 4
        st, kk = t // 4, t % 4
        off = (st % R) * 16384 + kk * 4096
        r = WF + 4 * (f % 8)
        return [f'ds_read_b64_tr_b16 a[{r}:{r+1}], v{g.VA[mb]} offset:{off}',
                f'ds_read_b64_tr_b16 a[{r+2}:{r+3}], v{g.VA[mb]} offset:{off+1024}']

    def qmfma(f, qb):
        t, mb = f // 4, f % 4
        wr = WF + 4 * (f % 8)
        xr = XF + 8 * (t % DX) + 4 * qb
        acc = ACC + (mb * 2 + qb) * 16
        return f'v_mfma_f32_32x32x16_bf16 v[{acc}:{acc+15}], a[{wr}:{wr+3}], a[{xr}:{xr+3}], v[{acc}:{acc+15}]'

    def run(ops):
        for o in ops:
            k._do(o)
            if isinstance(o, str) and ' m0,' in o:
                k.op('s_nop 0')

    run(dma_w(0))
    for t in range(4):
        run(xload(t))
    run(dma_w(1))
    for t in range(4, 8):
        run(xload(t))
    run(dma_w(2))
    run(dma_kv(0))
    run(dma_kv(1))
    for i in range(128):
        k.op(f'v_mov_b32 v{ACC+i}, 0')
    k.need([('dma', 0, q) for q in range(4)])
    k.op('s_barrier')
    for f in range(L):
        run(wread(f))
    stamp(k, 1)
    for it in k.loop(4, g.CNT, 'qproj'):
        pending = []
        for fb in range(64):
            f = it * 64 + fb
            k.op(qmfma(f, 0))
            fn = f + L
            if fn % 16 == 0:
                st = fn // 16
                k.need([('dma', st, q) for q in range(4)])
                k.op('s_barrier')
                pending += dma_w(st + 2)
            rd = wread(fn)
            k._do(rd[0])
            if pending:
                k._do(pending.pop(0))
            k.op(qmfma(f, 1))
            k._do(rd[1])
            if f % 4 == 3:
                for o in xload(f // 4 + DX):
                    k._do(o)
            if pending:
                k._do(pending.pop(0))
                if pending and isinstance(pending[0], str):
                    k._do(pending.pop(0))
        assert not pending
    stamp(k, 2)
    k.op('s_nop 7')
    k.op('s_nop 7')
    QF = 128
    for mb in range(4):
        for qb in range(2):
            acc = ACC + (mb * 2 + qb) * 16
            for j in range(8):
                tmp = 36 + (j % 4)
                k.op(f'v_cvt_pk_bf16_f32 v{tmp}, v{acc+2*j}, v{acc+2*j+1}')
                ks = 2 * mb + j // 4
                k.op(f'v_accvgpr_write_b32 a{QF + (qb*8+ks)*4 + j%4}, v{tmp}')
    for i in range(128):
        k.op(f'v_accvgpr_write_b32 a{i}, 0')
    k.op(f'v_mov_b32 v{LS[0]}, 0')
    k.op(f'v_mov_b32 v{LS[1]}, 0')

    SB = [128, 160]
    CI = 192
    PB = 224
    FR = 192
    LA = 4

    def kvread(b, j):
        sp = b + 1
        r = FR + 4 * (j % 16)
        so = (sp % 4) * 16384
        if j < 8:
            return [f'ds_read_b128 a[{r}:{r+3}], v{VK[j]} offset:{so}']
        kk, mb = (j - 8) // 4, (j - 8) % 4
        return [f'ds_read_b64_tr_b16 a[{r}:{r+1}], v{VV[mb]} offset:{so + kk*4096}',
                f'ds_read_b64_tr_b16 a[{r+2}:{r+3}], v{VV[mb]} offset:{so + kk*4096 + 2048}']

    def qk(b1, ks, qb, first_zero=False):
        s = SB[b1 % 2] + 16 * qb
        r = FR + 4 * ks
        q = QF + (qb * 8 + ks) * 4
        if ks == 0:
            c = '0' if first_zero else f'v[{CI+16*qb}:{CI+16*qb+15}]'
        else:
            c = f'v[{s}:{s+15}]'
        return f'v_mfma_f32_32x32x16_bf16 v[{s}:{s+15}], a[{r}:{r+3}], a[{q}:{q+3}], {c}'

    def pv(kk, mb, qb):
        o = (mb * 2 + qb) * 16
        r = FR + 4 * (8 + kk * 4 + mb)
        p = PB + (qb * 2 + kk) * 4
        return f'v_mfma_f32_32x32x16_bf16 a[{o}:{o+15}], a[{r}:{r+3}], v[{p}:{p+3}], a[{o}:{o+15}]'

    def maxops(b1):
        ops = []
        for step in range(8):
            for qb in range(2):
                s = SB[b1 % 2] + 16 * qb
                if step == 0:
                    ops.append(f'v_max3_f32 v{TM[qb]}, v{s}, v{s+1}, v{s+2}')
                elif step < 7:
                    ops.append(f'v_max3_f32 v{TM[qb]}, v{TM[qb]}, v{s+1+2*step}, v{s+2+2*step}')
                else:
                    ops.append(f'v_max_f32 v{TM[qb]}, v{TM[qb]}, v{s+15}')
        return ops

    k.need([('kv', 0, q) for q in range(4)])
    k.op('s_barrier')
    run(dma_kv(2))
    for j in range(8):
        run(kvread(-1, j))
    for ks in range(8):
        for qb in range(2):
            k.op(qk(0, ks, qb, True))
        if ks == 3:
            k.need([('kv', 1, q) for q in range(4)])
            k.op('s_barrier')
            run(dma_kv(3))
        if ks >= 4:
            run(kvread(0, ks - 4))
    k.op('s_nop 7')
    k.op('s_nop 7')
    for o in maxops(0):
        k.op(o)
    for qb in range(2):
        k.op(f'v_mov_b32 v{36+qb}, v{TM[qb]}')
    k.op('s_nop 1')
    for qb in range(2):
        k.op(f'v_permlane32_swap_b32 v{TM[qb]}, v{36+qb}')
    k.op('s_nop 0')
    for qb in range(2):
        k.op(f'v_max_f32 v{TM[qb]}, v{TM[qb]}, v{36+qb}')
    for qb in range(2):
        for i in range(16):
            k.op(f'v_sub_f32 v{SB[0]+16*qb+i}, v{SB[0]+16*qb+i}, v{TM[qb]}')
            k.op(f'v_sub_f32 v{CI+16*qb+i}, 0, v{TM[qb]}')
    stamp(k, 3)

    for b in range(16):
        last = b == 15
        sb = SB[b % 2]
        ex = []
        for kk in range(2):
            for qb in range(2):
                for j in range(4):
                    a0 = sb + 16 * qb + 8 * kk + 2 * j
                    ex.append(f'v_exp_f32 v{a0}, v{a0}')
                    ex.append(f'v_exp_f32 v{a0+1}, v{a0+1}')
                    ex.append(('cvt', f'v_cvt_pk_bf16_f32 v{PB + (qb*2+kk)*4 + j}, v{a0}, v{a0+1}', a0, qb))
        seq = []
        held = None
        for e in ex:
            if isinstance(e, tuple):
                if held is not None:
                    seq.append(held)
                held = e
            else:
                seq.append(e)
                if held is not None:
                    seq.append(held)
                    held = None
        if held is not None:
            seq.append('s_nop 0')
            seq.append(held)
        slots = [[] for _ in range(32)]
        adds = []
        nseq = len(seq)
        nsl = 23
        for i, e in enumerate(seq):
            sl = i * nsl // nseq
            if isinstance(e, tuple):
                slots[sl].append(e[1])
                adds.append((sl + 1, f'v_add_f32 v{LS[e[3]]}, v{LS[e[3]]}, v{e[2]}'))
                adds.append((sl + 1, f'v_add_f32 v{LS[e[3]]}, v{LS[e[3]]}, v{e[2]+1}'))
            else:
                slots[sl].append(e)
        ai = 0
        for sl in range(32):
            n = 1 if sl < 23 else 2
            while n > 0 and ai < len(adds) and adds[ai][0] <= sl:
                slots[sl].append(adds[ai][1])
                ai += 1
                n -= 1
        while ai < len(adds):
            slots[31].append(adds[ai][1])
            ai += 1
        if not last:
            mo = maxops(b + 1)
            for i, o in enumerate(mo):
                slots[23 + i // 2].append(o)
            slots[31].append(f'v_max_f32 v{TM[2]}, v{TM[0]}, v{TM[1]}')
            slots[31].append(f'v_cmp_lt_f32 vcc, s48, v{TM[2]}')
        pending = []
        for sl in range(32):
            j = sl // 2
            qb = sl % 2
            if sl < 16:
                if not last:
                    k.op(qk(b + 1, j, qb))
            else:
                kk, mb = (j - 8) // 4, (j - 8) % 4
                k.op(pv(kk, mb, qb))
            jn = j + LA
            bn = b
            if jn >= 16:
                jn -= 16
                bn = b + 1
            skip = (bn == 15 and jn < 8) or bn > 15
            if qb == 0 and jn == 0 and bn <= 15:
                k.need([('kv', bn + 1, q) for q in range(4)])
                k.op('s_barrier')
                if bn + 3 <= 16:
                    pending += dma_kv(bn + 3)
            if not skip:
                rd = kvread(bn, jn)
                if len(rd) == 2:
                    k._do(rd[qb])
                elif qb == 0:
                    k._do(rd[0])
            for o in slots[sl]:
                k.op(o)
            if pending:
                k._do(pending.pop(0))
                if pending and isinstance(pending[0], str):
                    k._do(pending.pop(0))
        assert not pending
        if not last:
            lab = k.newlabel('norescale')
            k.op(f's_cbranch_vccz {lab}')
            k.op(f's_call_b64 s[50:51], L_qattn_rescale{(b+1)%2}')
            k.label(lab)
    stamp(k, 4)
    for qb in range(2):
        k.op(f'v_mov_b32 v{36+qb}, v{LS[qb]}')
    k.op('s_nop 1')
    for qb in range(2):
        k.op(f'v_permlane32_swap_b32 v{LS[qb]}, v{36+qb}')
    k.op('s_nop 0')
    for qb in range(2):
        k.op(f'v_add_f32 v{LS[qb]}, v{LS[qb]}, v{36+qb}')
    for qb in range(2):
        k.op(f'v_rcp_f32 v{LS[qb]}, v{LS[qb]}')
    k.op('s_lshl_b32 s46, s44, 13')
    k.op('s_add_u32 s47, s46, 262144')
    k.op('s_nop 7')
    n = 0
    for mb in range(4):
        for qb in range(2):
            o = (mb * 2 + qb) * 16
            for half in range(2):
                T = 128 + (n % 8) * 8
                P = 192 + (n % 8) * 4
                n += 1
                for i in range(8):
                    k.op(f'v_accvgpr_read_b32 v{T+i}, a{o+8*half+i}')
                for i in range(8):
                    k.op(f'v_mul_f32 v{T+i}, v{T+i}, v{LS[qb]}')
                for j in range(4):
                    k.op(f'v_cvt_pk_bf16_f32 v{P+j}, v{T+2*j}, v{T+2*j+1}')
                ks = 2 * mb + half
                so = 's46' if qb == 0 else 's47'
                if ks < 4:
                    k.op(f'buffer_store_dwordx4 v[{P}:{P+3}], v{g.VL16}, s[{SO}:{SO+3}], {so} offen offset:{ks*1024}')
                else:
                    k.op(f'buffer_store_dwordx4 v[{P}:{P+3}], v39, s[{SO}:{SO+3}], {so} offen offset:{(ks-4)*1024}')
        if mb == 0:
            k.op(f'v_add_u32 v39, 4096, v{g.VL16}')
    stamp(k, 5)
    k.wait_all()
    stamp(k, 6)
    stamp_dump(k, 7, 2)
    k.label('L_qattn_end')
    k.op('s_endpgm')
    for par in range(2):
        sb = SB[par]
        k.label(f'L_qattn_rescale{par}')
        k.op('s_nop 15')
        for qb in range(2):
            k.op(f'v_mov_b32 v{36+qb}, v{TM[qb]}')
        k.op('s_nop 1')
        for qb in range(2):
            k.op(f'v_permlane32_swap_b32 v{TM[qb]}, v{36+qb}')
        k.op('s_nop 0')
        for qb in range(2):
            k.op(f'v_max3_f32 v{TM[qb]}, v{TM[qb]}, v{36+qb}, 0')
        for qb in range(2):
            k.op(f'v_sub_f32 v{36+qb}, 0, v{TM[qb]}')
        for qb in range(2):
            k.op(f'v_exp_f32 v{36+qb}, v{36+qb}')
        for qb in range(2):
            for i in range(16):
                k.op(f'v_sub_f32 v{sb+16*qb+i}, v{sb+16*qb+i}, v{TM[qb]}')
                k.op(f'v_sub_f32 v{CI+16*qb+i}, v{CI+16*qb+i}, v{TM[qb]}')
            k.op(f'v_mul_f32 v{LS[qb]}, v{LS[qb]}, v{36+qb}')
        for mb in range(4):
            for qb in range(2):
                o = (mb * 2 + qb) * 16
                for i in range(16):
                    k.op(f'v_accvgpr_read_b32 v{240+i}, a{o+i}')
                for i in range(16):
                    k.op(f'v_mul_f32 v{240+i}, v{240+i}, v{36+qb}')
                for i in range(16):
                    k.op(f'v_accvgpr_write_b32 a{o+i}, v{240+i}')
        k.op('s_nop 3')
        k.op('s_setpc_b64 s[50:51]')


def p3_common(k):
    k.op(f's_load_dwordx2 s[6:7], s[0:1], {A_WS}')
    get_wave(k)
    k.op('s_bfe_u32 s22, s2, 0x30003')
    k.op('s_and_b32 s23, s2, 3')
    k.op('s_lshl_b32 s23, s23, 2')
    k.op('s_lshr_b32 s26, s2, 6')
    k.op('s_add_u32 s23, s23, s26')
    k.op('s_lshl_b32 s44, s23, 3')
    k.op('s_add_u32 s44, s44, s22')


def gen_p3_mlp2(k):
    g = G
    k.op('s_cmp_ge_u32 s2, 256')
    k.op('s_cbranch_scc1 L_p3_end')
    stamp(k, 0)
    k.op('s_bitcmp1_b32 s2, 2')
    k.op('s_cbranch_scc1 L_p3_oproj')
    k.op(f's_load_dwordx2 s[4:5], s[0:1], {A_W2}')
    k.op(f's_load_dwordx2 s[24:25], s[0:1], {A_B2}')
    p3_common(k)
    gemm_setup_addrs(k, S * 2, True)
    k.wait_all(vm=False)
    k.op('s_lshl_b32 s26, s23, 8')
    k.op(f's_sub_u32 s27, {F*S*2}, s26')
    srd_off(k, g.SW, 4, 's26', 's27')
    k.op('s_lshl_b32 s26, s22, 2')
    k.op('s_add_u32 s26, s26, s16')
    k.op(f's_mul_i32 s27, s26, {224*1024}')
    k.op(f's_add_u32 s27, s27, {WS_U}')
    srd_off(k, g.SX, 6, 's27', 224 * 1024)
    k.op('s_lshl_b32 s27, s44, 15')
    k.op('s_lshl_b32 s26, s16, 13')
    k.op('s_add_u32 s27, s27, s26')
    k.op(f's_add_u32 s27, s27, {WS_G}')
    srd_off(k, 28, 6, 's27', 8192)
    k.op('s_lshl_b32 s27, s44, 7')
    k.op(f's_add_u32 s27, s27, {WS_FLAG}')
    srd_off(k, 36, 6, 's27', 128)
    srd(k, 32, 's24', 's25', S * 2)
    k.op(f's_mov_b32 {g.SOW}, 0')
    k.op(f's_mov_b32 {g.SOX}, 0')
    k.op(f'v_and_b32 v16, 31, v{g.VLANE}')
    k.op('v_lshlrev_b32 v16, 1, v16')
    k.op('s_lshl_b32 s26, s23, 8')
    for nb in range(4):
        k.op(f'buffer_load_ushort v{128+nb}, v16, s[32:35], s26 offen offset:{nb*64}')
    gemm128(k, S * 2, F // 64, True, False)
    stamp(k, 2)
    k.op(f's_mov_b32 s22, {hx(-math.log2(math.e))}')
    for nb in range(4):
        k.op(f'v_lshlrev_b32 v{128+nb}, 16, v{128+nb}')
    k.op(f'v_add_u32 v17, 4096, v{g.VL16}')
    for nb in range(4):
        for half in range(2):
            P = 160 + ((nb * 2 + half) % 4) * 4
            for jj in range(4):
                i0 = half * 8 + jj * 2
                a, b = g.ACC + 16 * nb + i0, g.ACC + 16 * nb + i0 + 1
                t0, t1 = 24 + (jj % 2) * 2, 25 + (jj % 2) * 2
                k.op(f'v_cvt_pk_bf16_f32 v{b}, v{a}, v{b}')
                k.op(f'v_lshlrev_b32 v{a}, 16, v{b}')
                k.op(f'v_and_b32 v{b}, 0xffff0000, v{b}')
                k.op(f'v_add_f32 v{a}, v{a}, v{128+nb}')
                k.op(f'v_add_f32 v{b}, v{b}, v{128+nb}')
                k.op(f'v_cvt_pk_bf16_f32 v{b}, v{a}, v{b}')
                k.op(f'v_lshlrev_b32 v{a}, 16, v{b}')
                k.op(f'v_and_b32 v{b}, 0xffff0000, v{b}')
                k.op(f'v_mul_f32 v{t0}, s22, v{a}')
                k.op(f'v_mul_f32 v{t1}, s22, v{b}')
                k.op(f'v_exp_f32 v{t0}, v{t0}')
                k.op(f'v_exp_f32 v{t1}, v{t1}')
                k.op(f'v_add_f32 v{t0}, 1.0, v{t0}')
                k.op(f'v_add_f32 v{t1}, 1.0, v{t1}')
                k.op(f'v_rcp_f32 v{t0}, v{t0}')
                k.op(f'v_rcp_f32 v{t1}, v{t1}')
                k.op(f'v_mul_f32 v{a}, v{a}, v{t0}')
                k.op(f'v_mul_f32 v{b}, v{b}, v{t1}')
                k.op(f'v_cvt_pk_bf16_f32 v{P+jj}, v{a}, v{b}')
            n = nb * 2 + half
            va = g.VL16 if n < 4 else 17
            k.op(f'buffer_store_dwordx4 v[{P}:{P+3}], v{va}, s[28:31], 0 offen offset:{(n%4)*1024} sc1')
    k.wait_all()
    k.op('s_barrier')
    k.op('s_cmp_lg_u32 s16, 0')
    k.op('s_cbranch_scc1 L_p3_mlp2_done')
    k.op('v_mov_b32 v16, 0')
    k.op('v_mov_b32 v17, 1')
    k.op('s_mov_b64 exec, 1')
    k.op('buffer_store_dword v17, v16, s[36:39], 0 offen sc1')
    k.op('s_mov_b64 exec, -1')
    k.label('L_p3_mlp2_done')
    stamp(k, 3)
    k.wait_all()
    stamp(k, 4)
    stamp_dump(k, 5, 3)
    k.label('L_p3_end')
    k.op('s_endpgm')


def gen_p3_oproj(k):
    g = G
    k.label('L_p3_oproj')
    k.op(f's_load_dwordx2 s[4:5], s[0:1], {A_WO}')
    k.op(f's_load_dwordx2 s[24:25], s[0:1], {A_X}')
    k.op(f's_load_dwordx2 s[40:41], s[0:1], {A_OUT}')
    p3_common(k)
    gemm_setup_addrs(k, D * 2, True)
    k.wait_all(vm=False)
    k.op('s_lshl_b32 s26, s22, 8')
    k.op(f's_sub_u32 s27, {HQ*DH*D*2}, s26')
    srd_off(k, g.SW, 4, 's26', 's27')
    k.op('s_lshl_b32 s26, s23, 2')
    k.op('s_add_u32 s26, s26, s16')
    k.op('s_lshl_b32 s27, s26, 18')
    k.op(f's_add_u32 s27, s27, {WS_O}')
    srd_off(k, g.SX, 6, 's27', 262144)
    k.op('s_lshl_b32 s27, s44, 15')
    k.op('s_lshl_b32 s45, s16, 11')
    k.op('s_add_u32 s27, s27, s45')
    k.op(f's_add_u32 s27, s27, {WS_G}')
    srd_off(k, 28, 6, 's27', 32768)
    k.op('s_lshl_b32 s27, s44, 7')
    k.op(f's_add_u32 s27, s27, {WS_FLAG}')
    srd_off(k, 36, 6, 's27', 128)
    srd(k, 32, 's24', 's25', S * D * 2)
    srd(k, 48, 's40', 's41', S * D * 2)
    k.op(f's_mov_b32 {g.SOW}, 0')
    k.op(f's_mov_b32 {g.SOX}, 0')
    k.op(f'v_and_b32 v16, 31, v{g.VLANE}')
    k.op('v_lshlrev_b32 v16, 11, v16')
    k.op(f'v_lshrrev_b32 v17, 5, v{g.VLANE}')
    k.op('v_lshl_add_u32 v16, v17, 3, v16')
    k.op('s_lshl_b32 s45, s26, 16')
    k.op('s_lshl_b32 s27, s22, 8')
    k.op('s_add_u32 s45, s45, s27')
    for mb in range(4):
        for gq in range(4):
            r = 128 + (mb * 4 + gq) * 2
            k.op(f'buffer_load_dwordx2 v[{r}:{r+1}], v16, s[32:35], s45 offen offset:{mb*64+gq*16}')
    gemm128(k, D * 2, HQ * DH // 64, True, True)
    stamp(k, 2)
    k.op('v_mov_b32 v17, 0')
    k.op('s_mov_b32 s46, 0x400000')
    k.label('L_p3_poll')
    k.op('buffer_load_dword v18, v17, s[36:39], 0 offen sc1')
    k.wait_all(lg=False)
    k.op('v_readfirstlane_b32 s47, v18')
    k.op('s_cmp_eq_u32 s47, 1')
    k.op('s_cbranch_scc1 L_p3_got')
    k.op('s_sleep 2')
    k.op('s_sub_u32 s46, s46, 1')
    k.op('s_cmp_lg_u32 s46, 0')
    k.op('s_cbranch_scc1 L_p3_poll')
    k.label('L_p3_got')
    stamp(k, 3)
    for mb in range(4):
        k.op(f's_mov_b32 s46, {mb*8192}')
        for half in range(2):
            r = 160 + (mb * 2 + half) * 4
            k.op(f'buffer_load_dwordx4 v[{r}:{r+3}], v{g.VL16}, s[28:31], s46 offen offset:{half*1024} sc1')
    for mb in range(4):
        for gq in range(4):
            xr = 128 + (mb * 4 + gq) * 2
            for jj in range(2):
                i0 = gq * 4 + jj * 2
                a, b = g.ACC + 16 * mb + i0, g.ACC + 16 * mb + i0 + 1
                gr = 160 + mb * 8 + i0 // 2
                t0, t1 = 24 + jj * 2, 25 + jj * 2
                k.op(f'v_cvt_pk_bf16_f32 v{b}, v{a}, v{b}')
                k.op(f'v_lshlrev_b32 v{t0}, 16, v{gr}')
                k.op(f'v_and_b32 v{t1}, 0xffff0000, v{gr}')
                k.op(f'v_lshlrev_b32 v{a}, 16, v{b}')
                k.op(f'v_and_b32 v{b}, 0xffff0000, v{b}')
                k.op(f'v_mul_f32 v{a}, v{a}, v{t0}')
                k.op(f'v_mul_f32 v{b}, v{b}, v{t1}')
                k.op(f'v_cvt_pk_bf16_f32 v{b}, v{a}, v{b}')
                k.op(f'v_lshlrev_b32 v{t0}, 16, v{xr+jj}')
                k.op(f'v_and_b32 v{t1}, 0xffff0000, v{xr+jj}')
                k.op(f'v_lshlrev_b32 v{a}, 16, v{b}')
                k.op(f'v_and_b32 v{b}, 0xffff0000, v{b}')
                k.op(f'v_add_f32 v{a}, v{a}, v{t0}')
                k.op(f'v_add_f32 v{b}, v{b}, v{t1}')
                k.op(f'v_cvt_pk_bf16_f32 v{xr+jj}, v{a}, v{b}')
            k.op(f'buffer_store_dwordx2 v[{xr}:{xr+1}], v16, s[48:51], s45 offen offset:{mb*64+gq*16}')
    k.wait_all()
    stamp(k, 4)
    stamp_dump(k, 5, 3)
    k.op('s_endpgm')


KERNELS = {}


def assemble(launches, kernels):
    head = open('recurrent_scan__sliding_block_cached__mixer_token_mlp__prompt.s.ref').read()
    hl = []
    for line in head.splitlines():
        if line.startswith('; Override'):
            break
        hl.append(line)
    out = '\n'.join(hl) + '\n'
    for name, grid, block, lds in launches:
        out += f'; @launch kernel={name} grid=({grid},1,1) block=({block},1,1) lds={lds}\n'
    out += '.amdgcn_target "amdgcn-amd-amdhsa--gfx950"\n.text\n'
    descs = ''
    for name, fn, vg, acc in kernels:
        text, desc, stats, n = build_kernel(name, fn, vgpr=vg, accum=acc)
        print(f'{name}: {n} lines, dyn {stats}', file=sys.stderr)
        out += text
        descs += desc
    out += '.section .rodata,"a"\n' + descs
    return out


if __name__ == '__main__':
    if len(sys.argv) > 2 and sys.argv[2] == 'final':
        STAMPS = False
    launches = [('ln_kernel', 256, 256, 16 * (2048 + 64)),
                ('mlp1_kernel', 224, 256, 131072),
                ('qattn_kernel', 256, 256, 131072),
                ('p3_kernel', 256, 256, 131072)]
    kernels = [('ln_kernel', gen_ln, 128, 128),
               ('mlp1_kernel', gen_mlp1, 512, 256),
               ('qattn_kernel', gen_qattn, 512, 256),
               ('p3_kernel', [gen_p3_mlp2, gen_p3_oproj], 512, 256)]
    s = assemble(launches, kernels)
    open(sys.argv[1] if len(sys.argv) > 1 else 'out.s', 'w').write(s)
```

```python
import re

REG_RE = re.compile(r'^(-?)(?:abs\()?([vas])(?:(\d+)|\[(\d+):(\d+)\])\)?$')


def parse_reg(tok):
    tok = tok.strip()
    m = REG_RE.match(tok)
    if m:
        kind = m.group(2)
        if m.group(3) is not None:
            lo = hi = int(m.group(3))
        else:
            lo, hi = int(m.group(4)), int(m.group(5))
        return [(kind, i) for i in range(lo, hi + 1)]
    if tok == 'vcc':
        return [('vcc', 0)]
    if tok == 'exec':
        return [('exec', 0)]
    if tok == 'm0':
        return [('m0', 0)]
    return []


TRANS = ('v_exp_f32', 'v_log_f32', 'v_rcp_f32', 'v_rsq_f32', 'v_sqrt_f32', 'v_sin_f32', 'v_cos_f32')


class Ins:
    __slots__ = ('text', 'op', 'dst', 'src', 'kind', 'srcc', 'srcab', 'nstates', 'sregs_vmem', 'storedata')

    def __init__(self, text):
        self.text = text
        t = text.split(';')[0].strip()
        parts = t.split(None, 1)
        op = parts[0]
        self.op = op
        rest = parts[1] if len(parts) > 1 else ''
        ops = []
        cur = ''
        depth = 0
        for ch in rest:
            if ch in '[(':
                depth += 1
            if ch in '])':
                depth -= 1
            if ch == ',' and depth == 0:
                ops.append(cur.strip())
                cur = ''
            else:
                cur += ch
        if cur.strip():
            ops.append(cur.strip())
        mods = ''
        if ops:
            lp = ops[-1].split(None, 1)
            ops[-1] = lp[0]
            mods = lp[1] if len(lp) > 1 else ''
        R = [parse_reg(o) for o in ops]
        self.dst = []
        self.src = []
        self.srcc = []
        self.srcab = []
        self.sregs_vmem = []
        self.storedata = []
        self.nstates = 1
        self.kind = 'other'
        if op.startswith('v_mfma'):
            self.kind = 'mfma'
            self.dst = R[0]
            self.srcab = R[1] + R[2]
            self.srcc = R[3]
            self.src = self.srcab + self.srcc
        elif op.startswith('v_cmp'):
            self.kind = 'valu'
            self.dst = R[0]
            self.src = sum(R[1:], [])
        elif op.startswith('v_permlane') and 'swap' in op:
            self.kind = 'valu'
            self.dst = R[0] + R[1]
            self.src = R[0] + R[1]
        elif op.startswith('v_'):
            self.kind = 'valu'
            self.dst = R[0]
            self.src = sum(R[1:], [])
            if op.startswith(('v_fmac', 'v_dot2c', 'v_pk_fmac')) or 'dpp' in op or 'row_' in mods or 'quad_perm' in mods:
                self.src = self.src + R[0]
            if op.startswith('v_cndmask') and len(ops) == 3:
                self.src = self.src + [('vcc', 0)]
        elif op.startswith('ds_read') or op.startswith('ds_bpermute') or op.startswith('ds_swizzle'):
            self.kind = 'lds_ld'
            self.dst = R[0]
            self.src = sum(R[1:], [])
        elif op.startswith('ds_write'):
            self.kind = 'lds_st'
            self.src = sum(R, [])
        elif op.startswith('buffer_load') or op.startswith('global_load'):
            if re.search(r'\blds\b', mods):
                self.kind = 'dma'
                self.src = sum(R, []) + [('m0', 0)]
            else:
                self.kind = 'vm_ld'
                self.dst = R[0]
                self.src = sum(R[1:], [])
            self.sregs_vmem = [r for r in self.src if r[0] == 's']
        elif op.startswith('buffer_store') or op.startswith('buffer_atomic'):
            self.kind = 'vm_st'
            self.src = sum(R, [])
            self.sregs_vmem = [r for r in self.src if r[0] == 's']
            if 'x4' in op or 'x3' in op:
                self.storedata = R[0]
        elif op in ('buffer_wbl2', 'buffer_inv'):
            self.kind = 'vm_st'
        elif op.startswith('s_load') or op.startswith('s_memtime') or op.startswith('s_memrealtime'):
            self.kind = 'smem'
            self.dst = R[0]
            self.src = sum(R[1:], [])
        elif op == 's_nop':
            self.kind = 'nop'
            self.nstates = int(ops[0], 0) + 1
        elif op.startswith(('s_cmp', 's_cbranch', 's_branch', 's_barrier', 's_waitcnt', 's_endpgm', 's_sleep', 's_setprio', 's_bitcmp', 's_call', 's_setpc')):
            self.kind = 'sctl'
            self.src = sum(R, [])
            if 'vcc' in op:
                self.src = [('vcc', 0)]
        elif op.startswith('s_'):
            self.kind = 'salu'
            self.dst = R[0] if R else []
            self.src = sum(R[1:], [])
            if 'saveexec' in op:
                self.dst = self.dst + [('exec', 0)]
        else:
            raise ValueError('unknown instruction: ' + text)


_ins_cache = {}


def get_ins(text):
    i = _ins_cache.get(text)
    if i is None:
        i = Ins(text)
        _ins_cache[text] = i
    return i


class K:
    def __init__(self, name, plan=None):
        self.name = name
        self.plan = plan
        self.out = []
        self.cap = None
        self.suppress = False
        self.prefix = ()
        self.idx = 0
        self.events = []
        self.nvm = 0
        self.nlg = 0
        self.pend_vm = {}
        self.pend_lg = {}
        self.tags = {}
        self.trace = []
        self.smem_out = False
        self.uid = 0

    def _text(self, s):
        if self.cap is not None:
            self.cap.append(s)
        if not self.suppress:
            self.out.append(s)

    def label(self, l):
        self._text(l + ':')

    def comment(self, c):
        if not self.suppress:
            self.out.append('; ' + c)

    def newlabel(self, base):
        self.uid += 1
        return f'L_{self.name}_{base}_{self.uid}'

    def _site(self):
        s = (self.prefix, self.idx)
        self.idx += 1
        return s

    def _wait_event(self, site, need_vm, need_lg):
        if self.plan is None:
            self.events.append(('w', site, need_vm, need_lg, self.nvm, self.nlg))
        else:
            p = self.plan.get(site)
            if p is not None:
                vmN, lgN = p
                parts = []
                if vmN is not None:
                    parts.append(f'vmcnt({vmN})')
                if lgN is not None:
                    parts.append(f'lgkmcnt({lgN})')
                t = 's_waitcnt ' + ' '.join(parts)
                self._text('  ' + t)
                self.trace.append(get_ins(t))

    def op(self, text, tag=None, need=None, nowait=False):
        ins = get_ins(text)
        site = self._site()
        nv = -1
        nl = -1
        for r in (ins.src if nowait else ins.src + ins.dst):
            if r in self.pend_vm:
                nv = max(nv, self.pend_vm[r])
            if r in self.pend_lg:
                nl = max(nl, self.pend_lg[r])
        if need:
            for t in need:
                if t in self.tags:
                    c, s = self.tags[t]
                    if c == 'vm':
                        nv = max(nv, s)
                    else:
                        nl = max(nl, s)
                else:
                    raise KeyError(f'need of unknown tag {t}')
        if nv >= 0 or nl >= 0 or self.plan is not None:
            self._wait_event(site, nv, nl)
        self._text('  ' + text)
        self.trace.append(ins)
        if ins.kind in ('vm_ld', 'vm_st', 'dma'):
            for r in ins.dst:
                self.pend_vm[r] = self.nvm
            if tag is not None:
                self.tags[tag] = ('vm', self.nvm)
            self.nvm += 1
        elif ins.kind in ('lds_ld', 'lds_st'):
            for r in ins.dst:
                self.pend_lg[r] = self.nlg
            if tag is not None:
                self.tags[tag] = ('lg', self.nlg)
            self.nlg += 1
        elif ins.kind == 'smem':
            self.smem_out = True
        return ins

    def wait_all(self, vm=True, lg=True):
        parts = []
        if vm:
            parts.append('vmcnt(0)')
        if lg:
            parts.append('lgkmcnt(0)')
            self.smem_out = False
        t = 's_waitcnt ' + ' '.join(parts)
        self._site()
        if self.plan is None:
            self.events.append(('f', self.nvm if vm else None, self.nlg if lg else None))
        self._text('  ' + t)
        self.trace.append(get_ins(t))

    def need(self, tags):
        site = self._site()
        nv = nl = -1
        for t in tags:
            c, s = self.tags[t]
            if c == 'vm':
                nv = max(nv, s)
            else:
                nl = max(nl, s)
        if nv >= 0 or nl >= 0 or self.plan is not None:
            self._wait_event(site, nv, nl)

    def need_all_lg(self):
        site = self._site()
        if self.nlg > 0:
            self._wait_event(site, -1, self.nlg - 1)

    def need_all_vm(self):
        site = self._site()
        if self.nvm > 0:
            self._wait_event(site, self.nvm - 1, -1)

    def raw(self, text):
        self._text('  ' + text)
        self.trace.append(get_ins(text))

    def virtual_vm(self, tag):
        self.tags[tag] = ('vm', self.nvm)
        self.nvm += 1

    def pretag(self, tag):
        self.tags[tag] = ('vm', -1)

    def loop(self, n, cnt, base='loop', init=None):
        lab = self.newlabel(base)
        self.op(f's_mov_b32 {cnt}, {n if init is None else init}')
        save_prefix, save_idx = self.prefix, self.idx
        save_cap, save_sup = self.cap, self.suppress
        first = None
        save_uid = self.uid
        self.label(lab)
        for it in range(n):
            self.prefix = save_prefix + (lab,)
            self.idx = 0
            self.cap = []
            self.uid = save_uid
            self.suppress = save_sup or it > 0
            yield it
            self.op(f's_sub_u32 {cnt}, {cnt}, 1')
            self.op(f's_cmp_lg_u32 {cnt}, 0')
            self.op(f's_cbranch_scc1 {lab}')
            if first is None:
                first = self.cap
            elif self.plan is not None and first != self.cap:
                for a, b in zip(first, self.cap):
                    if a != b:
                        raise AssertionError(f'loop {lab} body differs at iter {it}:\n{a}\n{b}')
                raise AssertionError(f'loop {lab} body length differs at iter {it}')
        self.cap = save_cap
        if self.cap is not None:
            self.cap.extend(first)
        self.suppress = save_sup
        self.prefix, self.idx = save_prefix, save_idx + 1

    def interleave(self, mfmas, fillers, start=0, per=None):
        n = len(mfmas)
        nf = len(fillers)
        slots = n - start
        fi = 0
        for i, m in enumerate(mfmas):
            self._do(m)
            if i >= start:
                if per is not None:
                    tgt = min(nf, per * (i - start + 1))
                else:
                    tgt = (nf * (i - start + 1) + slots - 1) // slots
                while fi < tgt:
                    self._do(fillers[fi])
                    fi += 1
        while fi < nf:
            self._do(fillers[fi])
            fi += 1

    def _do(self, x):
        if x is None:
            return
        if callable(x):
            x()
        elif isinstance(x, list):
            for y in x:
                self._do(y)
        elif isinstance(x, tuple):
            self.op(x[0], **x[1])
        else:
            self.op(x)


def make_plan(events):
    Nvm = {}
    Nlg = {}
    for e in events:
        if e[0] == 'w':
            _, site, nv, nl, iv, il = e
            if nv >= 0:
                n = iv - nv - 1
                Nvm[site] = min(Nvm.get(site, 63), n, 63)
            if nl >= 0:
                n = il - nl - 1
                Nlg[site] = min(Nlg.get(site, 15), n, 15)
    en_vm = set()
    en_lg = set()
    rv = -1
    rl = -1
    for e in events:
        if e[0] == 'f':
            if e[1] is not None:
                rv = e[1] - 1
            if e[2] is not None:
                rl = e[2] - 1
            continue
        _, site, nv, nl, iv, il = e
        if nv > rv:
            en_vm.add(site)
        if site in en_vm:
            rv = max(rv, iv - Nvm[site] - 1)
        if nl > rl:
            en_lg.add(site)
        if site in en_lg:
            rl = max(rl, il - Nlg[site] - 1)
    plan = {}
    for s in en_vm | en_lg:
        plan[s] = (Nvm[s] if s in en_vm else None, Nlg[s] if s in en_lg else None)
    return plan


def mfma_passes(op):
    if '32x32x16' in op or '32x32x8' in op:
        return 8
    if '16x16x32' in op or '16x16x16' in op:
        return 4
    raise ValueError(op)


def check_hazards(trace, name=''):
    errs = []
    pos = 0
    last_valu_w = {}
    last_trans_w = {}
    last_mfma_w = {}
    last_mfma_c = {}
    last_salu_m0 = -100
    last_valu_sgpr_w = {}
    last_store_data = {}
    need_d = {4: 8, 8: 12}
    need_c_war = {4: 3, 8: 7}
    need_overlap = {4: 6, 8: 10}

    def err(ins, msg):
        if len(errs) < 40:
            errs.append(f'[{name}] {msg}: {ins.text}')

    for ins in trace:
        def dist(p):
            return pos - p - 1
        if ins.kind == 'mfma':
            for r in ins.src:
                if r in last_valu_w and dist(last_valu_w[r]) < 2:
                    err(ins, f'VALU->MFMA src {r} dist {dist(last_valu_w[r])}')
            for r in ins.srcab:
                if r in last_mfma_w:
                    p, ps, _ = last_mfma_w[r]
                    if dist(p) < need_d[ps]:
                        err(ins, f'MFMA D->MFMA A/B {r} dist {dist(p)}')
            if ins.srcc:
                for r in ins.srcc:
                    if r in last_mfma_w:
                        p, ps, pi = last_mfma_w[r]
                        if pi.dst != ins.srcc and dist(p) < need_overlap[ps]:
                            err(ins, f'MFMA D->MFMA C overlap {r} dist {dist(p)}')
            for r in ins.dst:
                if r in last_mfma_w and r not in ins.srcc:
                    p, ps, pi = last_mfma_w[r]
                    if dist(p) < need_overlap[ps]:
                        err(ins, f'MFMA D->MFMA D WAW {r} dist {dist(p)}')
        elif ins.kind in ('valu', 'lds_ld', 'lds_st', 'vm_ld', 'vm_st', 'dma'):
            for r in ins.src + ins.dst:
                if r in last_mfma_w:
                    p, ps, _ = last_mfma_w[r]
                    if dist(p) < need_d[ps]:
                        err(ins, f'MFMA D->{ins.kind} {r} dist {dist(p)}')
            if ins.kind == 'valu':
                for r in ins.dst:
                    if r in last_mfma_c:
                        p, ps = last_mfma_c[r]
                        if dist(p) < need_c_war[ps]:
                            err(ins, f'MFMA C read->VALU write {r} dist {dist(p)}')
                    if r in last_store_data and dist(last_store_data[r]) < 2:
                        err(ins, f'store data WAR {r}')
                if not ins.op.startswith(TRANS):
                    for r in ins.src:
                        if r in last_trans_w and dist(last_trans_w[r]) < 1:
                            err(ins, f'trans->VALU {r}')
                isperm = ins.op.startswith('v_permlane')
                isdpp = 'dpp' in ins.text or 'row_' in ins.text or 'quad_perm' in ins.text
                if isperm or isdpp:
                    for r in ins.src:
                        if r in last_valu_w and dist(last_valu_w[r]) < 2:
                            err(ins, f'VALU->permlane/dpp {r} dist {dist(last_valu_w[r])}')
                if ins.op.startswith(('v_readfirstlane', 'v_readlane')):
                    for r in ins.src:
                        if r in last_valu_w and dist(last_valu_w[r]) < 1:
                            err(ins, f'VALU->readlane {r}')
                for r in ins.src:
                    if r in last_valu_sgpr_w and dist(last_valu_sgpr_w[r]) < 2:
                        err(ins, f'VALU sgpr write->VALU read {r}')
            else:
                for r in ins.src:
                    if r in last_trans_w and dist(last_trans_w[r]) < 1:
                        err(ins, f'trans->mem {r}')
            if ins.kind in ('vm_ld', 'vm_st', 'dma'):
                for r in ins.sregs_vmem:
                    if r in last_valu_sgpr_w and dist(last_valu_sgpr_w[r]) < 5:
                        err(ins, f'VALU sgpr write->VMEM {r}')
            if ins.kind == 'dma' and dist(last_salu_m0) < 1:
                err(ins, 'm0 write->DMA')
            if ins.kind in ('lds_ld', 'vm_ld'):
                for r in ins.dst:
                    if r in last_store_data and dist(last_store_data[r]) < 1:
                        err(ins, f'store data WAR(load) {r}')
        if ins.kind == 'mfma':
            ps = mfma_passes(ins.op)
            for r in ins.dst:
                last_mfma_w[r] = (pos, ps, ins)
                last_valu_w.pop(r, None)
            for r in ins.srcc:
                last_mfma_c[r] = (pos, ps)
        elif ins.kind == 'valu':
            for r in ins.dst:
                if r[0] in ('s', 'vcc'):
                    last_valu_sgpr_w[r] = pos
                else:
                    last_valu_w[r] = pos
                    last_mfma_w.pop(r, None)
                    if ins.op.startswith(TRANS):
                        last_trans_w[r] = pos
                    else:
                        last_trans_w.pop(r, None)
        elif ins.kind == 'salu':
            for r in ins.dst:
                if r == ('m0', 0):
                    last_salu_m0 = pos
                last_valu_sgpr_w.pop(r, None)
        elif ins.kind in ('lds_ld', 'vm_ld'):
            for r in ins.dst:
                last_mfma_w.pop(r, None)
                last_valu_w.pop(r, None)
                last_trans_w.pop(r, None)
        if ins.storedata:
            for r in ins.storedata:
                last_store_data[r] = pos
        pos += ins.nstates
    return errs


def build_kernel(name, genfn, vgpr=512, sgpr=102, accum=256, short=None):
    fns = genfn if isinstance(genfn, (list, tuple)) else [genfn]
    outl = []
    trace = []
    for n, fn in enumerate(fns):
        k1 = K(f'{short or name}{n}', None)
        fn(k1)
        plan = make_plan(k1.events)
        k2 = K(f'{short or name}{n}', plan)
        fn(k2)
        errs = check_hazards(k2.trace, name)
        if errs:
            raise AssertionError('hazards:\n' + '\n'.join(errs))
        outl += k2.out
        trace += k2.trace
    body = '\n'.join(outl)
    text = f"""
.globl {name}
.p2align 8
.type {name},@function
{name}:
{body}
"""
    desc = f"""
.p2align 6
.amdhsa_kernel {name}
  .amdhsa_next_free_vgpr {vgpr}
  .amdhsa_next_free_sgpr {sgpr}
  .amdhsa_accum_offset {accum}
  .amdhsa_group_segment_fixed_size 0
  .amdhsa_kernarg_size 104
  .amdhsa_user_sgpr_count 2
  .amdhsa_user_sgpr_kernarg_segment_ptr 1
  .amdhsa_system_sgpr_workgroup_id_x 1
.end_amdhsa_kernel
"""
    stats = {}
    for ins in trace:
        stats[ins.kind] = stats.get(ins.kind, 0) + 1
    return text, desc, stats, len(outl)
```

```python
import sys, struct, math
from asmgen import K, build_kernel

S, D, HQ, HKV, DH, SK, W, F = 2048, 1024, 32, 4, 128, 2048, 512, 3584
KNAME = 'recurrent_scan__sliding_block_cached__mixer_token_mlp__prompt_kernel'
MB = 1 << 20
WS_XN = 0
WS_H = 4 * MB
WS_O = 8 * MB
WS_U = 24 * MB
WS_G = 32 * MB
WS_FLAG = 40 * MB
FL_LN, FL_O, FL_U, FL_G, FL_DUMMY = 0, 8192, 16384, 24576, 32768
PX, PK, PV, PWQ, PWO, PBX, PW1, PB1, PW2, PB2, POUT, PDBG, PWS = [72 + 2 * i for i in range(13)]
NEARLY = 12

STAMPS = True
THR = 16.0
QSCALE = math.log2(math.e) / math.sqrt(DH)
GELU_C0 = -2.0 * math.log2(math.e) * math.sqrt(2.0 / math.pi)
GELU_C1 = GELU_C0 * 0.044715

WAVE, M0B, CNT = 's16', 's19', 's20'
SX2, SKV, SST, SFL = 24, 28, 32, 52
HEAD, QT, M1DT, M1FT, P3DT, P3ST, NONCE, SOKV = [f's{i}' for i in range(36, 44)]
RET2 = 's[48:49]'
STHR, WSTR0 = 's50', 's51'
TILE, GID, UFLAG, HASM = 's68', 's69', 's70', 's71'
FS = ['0', 's98', 's99', 's100']
VLANE, VL16 = 2, 3
VAQ = [8, 9, 10, 11]
VD2 = [12, 13, 14, 15]
VK = list(range(16, 24))
VV = [24, 25, 26, 27]
LS = [28, 29]
TM = [30, 31, 32]
VSWZ, VR4 = 33, 34
VGA = [40, 41, 42, 43]
VGA2 = [44, 45, 46, 47]
VF4 = [52, 53, 54, 55]
VL16B = 57
VL128, VDUM, VFL, VFV = 58, 59, 60, 61
LN_LDS = 131072
KVB = 65536


class Set:
    def __init__(self, sw, sx, sow, sox, vd):
        self.sw, self.sx, self.sow, self.sox, self.vd = sw, sx, sow, sox, vd


SETA = Set(8, 12, 's17', 's18', [4, 5, 6, 7])
SETB = Set(4, 44, 's66', 's67', [48, 49, 50, 51])


def f2u(x):
    return struct.unpack('<I', struct.pack('<f', x))[0]


def hx(x):
    return f'0x{f2u(x):08x}'


class Rec:
    def __init__(self):
        self.ops = []

    def op(self, t, **kw):
        if t.startswith('s_addc_u32'):
            self.ops[-1] = [self.ops[-1], t]
            return
        self.ops.append((t, kw) if kw else t)


def srd_off(k, d, plo, off, nrec):
    if off == 0:
        k.op(f's_mov_b32 s{d}, s{plo}')
        k.op(f's_and_b32 s{d+1}, s{plo+1}, 0xffff')
    else:
        k.op(f's_add_u32 s{d}, s{plo}, {off}')
        k.op(f's_addc_u32 s{d+1}, s{plo+1}, 0')
        k.op(f's_and_b32 s{d+1}, s{d+1}, 0xffff')
    k.op(f's_mov_b32 s{d+2}, {nrec}')
    k.op(f's_mov_b32 s{d+3}, 0x00020000')


def stamp(k, i):
    if not STAMPS:
        return
    k.op('s_memtime s[56:57]')
    k.op('s_memrealtime s[58:59]')
    k.wait_all(vm=False)
    k.op(f'v_writelane_b32 v62, s56, {i}')
    k.op(f'v_writelane_b32 v63, s58, {i}')


def stamp_dump(k):
    if not STAMPS:
        return
    lab = k.newlabel('nostamp')
    k.op(f's_cmp_lg_u32 {WAVE}, 0')
    k.op(f's_cbranch_scc1 {lab}')
    srd_off(k, 60, PWS, 64 * MB, MB)
    k.op('s_lshl_b32 s64, s2, 9')
    k.op(f'v_lshlrev_b32 v1, 3, v{VLANE}')
    k.op('buffer_store_dwordx2 v[62:63], v1, s[60:63], s64 offen')
    k.wait_all()
    k.label(lab)


def run(k, ops):
    for o in ops:
        k._do(o)
        if isinstance(o, str) and ' m0,' in o:
            k.op('s_nop 0')


def flag_store(k, off_sreg):
    lab = k.newlabel('nopub')
    k.raw(f's_cmp_lg_u32 {WAVE}, 0')
    k.raw(f's_cbranch_scc1 {lab}')
    k.raw(f'v_mov_b32 v1, {off_sreg}')
    k.raw(f'v_mov_b32 v56, {NONCE}')
    k.raw('s_mov_b64 exec, 1')
    k.raw(f'buffer_store_dword v56, v1, s[{SFL}:{SFL+3}], 0 offen sc1')
    k.raw('s_mov_b64 exec, -1')
    k.raw('s_nop 3')
    k.label(lab)


def flag_issue(k, n):
    for j in range(n):
        k.op(f'buffer_load_dword v{VF4[j]}, v{VFL}, s[{SFL}:{SFL+3}], {FS[j]} offen sc1')


def flag_test(k, n):
    if n == 1:
        k.op(f'v_cmp_ne_u32 vcc, {NONCE}, v{VF4[0]}')
        return
    for j in range(4):
        k.op(f'v_xor_b32 v{VF4[j]}, {NONCE}, v{VF4[j]}')
    k.op(f'v_or3_b32 v{VF4[0]}, v{VF4[0]}, v{VF4[1]}, v{VF4[2]}')
    k.op(f'v_or_b32 v{VF4[0]}, v{VF4[0]}, v{VF4[3]}')
    k.op(f'v_cmp_ne_u32 vcc, 0, v{VF4[0]}')


def flag_check(k, n):
    lab = k.newlabel('fok')
    flag_test(k, n)
    k.raw(f's_cbranch_vccz {lab}')
    k.raw(f's_call_b64 {RET2}, L_poll{n}')
    k.label(lab)


def gen_poll(k):
    for n in (1, 4):
        k.label(f'L_poll{n}')
        k.op('s_mov_b32 s64, 0x200000')
        k.label(f'L_poll{n}_loop')
        flag_issue(k, n)
        k.wait_all(lg=False)
        flag_test(k, n)
        k.op(f's_cbranch_vccz L_poll{n}_done')
        k.op('s_sleep 1')
        k.op('s_sub_u32 s64, s64, 1')
        k.op('s_cmp_lg_u32 s64, 0')
        k.op(f's_cbranch_scc1 L_poll{n}_loop')
        k.label(f'L_poll{n}_done')
        k.op(f's_setpc_b64 {RET2}')


def wg_poll(k, n):
    lab = k.newlabel('wp')
    k.raw(f's_cmp_lg_u32 {WAVE}, 0')
    k.raw(f's_cbranch_scc1 {lab}')
    k.raw(f's_call_b64 {RET2}, L_poll{n}')
    k.label(lab)
    k.op('s_barrier')


def weave(k, main, fill, start=0, stop=None):
    n = len(main)
    stop = n if stop is None else stop
    nf = len(fill)
    fi = 0
    for i, o in enumerate(main):
        k._do(o)
        if i >= start:
            tgt = min(nf, (nf * (i - start + 1)) // max(1, stop - start))
            while fi < tgt:
                for x in fill[fi]:
                    k._do(x)
                fi += 1
    while fi < nf:
        run(k, fill[fi])
        fi += 1


def dma_items(ops):
    return [[ops[0]], [ops[1]], [ops[2]], [ops[3]], [ops[4], ops[5]]]


def vd_ops(st, ldw):
    ops = [f's_mul_i32 s21, {WAVE}, {16*ldw}',
           f'v_mul_u32_u24 v{st.vd[0]}, {ldw}, v{VR4}',
           f'v_add3_u32 v{st.vd[0]}, v{st.vd[0]}, v{VSWZ}, s21']
    for q in range(1, 4):
        ops.append(f'v_add_u32 v{st.vd[q]}, {q*(4*ldw-1024)}, v{st.vd[0]}')
    ops.append(f's_mov_b32 {st.sow}, 0')
    ops.append(f's_mov_b32 {st.sox}, 0')
    return ops


def dma_w(st, name, stage, slot, stride):
    ops = [f's_add_u32 m0, {M0B}, {slot*16384}']
    for q in range(4):
        ops.append((f'buffer_load_dwordx4 v{st.vd[q]}, s[{st.sw}:{st.sw+3}], {st.sow} offen offset:{q*1024} lds',
                    dict(tag=(name, stage, q))))
    ops.append(f's_add_u32 {st.sow}, {st.sow}, {stride}')
    return ops


def dma_kv(sp):
    ops = [f's_add_u32 m0, {M0B}, {KVB + (sp % 4)*16384}']
    for q in range(4):
        ops.append((f'buffer_load_dwordx4 v{VD2[q]}, s[{SKV}:{SKV+3}], {SOKV} offen offset:{q*1024} lds',
                    dict(tag=('kv', sp, q))))
    ops.append(f's_add_u32 {SOKV}, {SOKV}, 8192')
    return ops


def setup_m(k, st):
    for o in vd_ops(st, F * 2):
        k.op(o)
    k.op(f's_lshl_b32 s21, {M1FT}, 8')
    k.op(f's_sub_u32 s22, {S*F*2}, s21')
    srd_off(k, st.sw, PW1, 's21', 's22')
    k.op(f's_lshl_b32 s21, {M1DT}, 2')
    k.op(f's_add_u32 s21, s21, {WAVE}')
    k.op('s_lshl_b32 s22, s21, 17')
    k.op(f's_add_u32 s22, s22, {WS_H}')
    srd_off(k, st.sx, PWS, 's22', 131072)


def setup_q(k, st):
    ldw = HQ * DH * 2
    for o in vd_ops(st, ldw):
        k.op(o)
    k.op(f's_lshl_b32 s21, {HEAD}, 8')
    k.op(f's_sub_u32 s22, {D*ldw}, s21')
    srd_off(k, st.sw, PWQ, 's21', 's22')
    k.op(f's_lshl_b32 s21, {QT}, 3')
    k.op(f's_lshl_b32 s22, {WAVE}, 1')
    k.op('s_add_u32 s21, s21, s22')
    k.op('s_lshl_b32 s22, s21, 16')
    srd_off(k, st.sx, PWS, 's22', 65536)
    k.op('s_add_u32 s22, s22, 65536')
    srd_off(k, SX2, PWS, 's22', 65536)


def setup_mlp2(k, st):
    for o in vd_ops(st, S * 2):
        k.op(o)
    k.op(f's_lshl_b32 s21, {P3ST}, 8')
    k.op(f's_sub_u32 s22, {F*S*2}, s21')
    srd_off(k, st.sw, PW2, 's21', 's22')
    k.op(f's_lshl_b32 s21, {P3DT}, 2')
    k.op(f's_add_u32 s21, s21, {WAVE}')
    k.op(f's_mul_i32 s22, s21, {224*1024}')
    k.op(f's_add_u32 s22, s22, {WS_U}')
    srd_off(k, st.sx, PWS, 's22', 224 * 1024)
    k.op(f'v_min_u32 v{VFL}, {NEARLY-1}, v{VLANE}')
    k.op(f'v_lshlrev_b32 v{VFL}, 5, v{VFL}')
    k.op(f's_lshl_b32 s21, {P3DT}, 10')
    k.op(f's_add_u32 s21, s21, {FL_U}')
    k.op(f'v_add_u32 v{VFL}, s21, v{VFL}')


def late_mlp2(k):
    k.op(f'v_and_b32 v{VFL}, 15, v{VLANE}')
    k.op(f'v_lshlrev_b32 v{VFL}, 5, v{VFL}')
    k.op(f's_lshl_b32 s21, {P3DT}, 10')
    k.op(f's_add_u32 s21, s21, {FL_U + NEARLY*32}')
    k.op(f'v_add_u32 v{VFL}, s21, v{VFL}')


def setup_oproj(k, st):
    for o in vd_ops(st, D * 2):
        k.op(o)
    k.op(f's_lshl_b32 s21, {P3DT}, 8')
    k.op(f's_sub_u32 s22, {HQ*DH*D*2}, s21')
    srd_off(k, st.sw, PWO, 's21', 's22')
    k.op(f's_lshl_b32 s21, {P3ST}, 2')
    k.op(f's_add_u32 s21, s21, {WAVE}')
    k.op('s_lshl_b32 s22, s21, 18')
    k.op(f's_add_u32 s22, s22, {WS_O}')
    srd_off(k, st.sx, PWS, 's22', 262144)
    k.op(f'v_and_b32 v{VFL}, 15, v{VLANE}')
    k.op(f'v_lshlrev_b32 v{VFL}, 5, v{VFL}')
    k.op(f's_lshr_b32 s21, {P3ST}, 1')
    k.op('s_lshl_b32 s21, s21, 10')
    k.op(f's_add_u32 s21, s21, {FL_O}')
    k.op(f'v_add_u32 v{VFL}, s21, v{VFL}')


def late_oproj(k):
    k.op(f'v_add_u32 v{VFL}, {16*32}, v{VFL}')


def flags_ln_all(k):
    k.op(f'v_lshlrev_b32 v{VFL}, 5, v{VLANE}')


def bias_load_ops():
    r_ = Rec()
    srd_off(r_, 60, PB1, 0, F * 2)
    r_.op(f'v_lshrrev_b32 v1, 5, v{VLANE}')
    r_.op('v_lshlrev_b32 v1, 3, v1')
    r_.op(f's_lshl_b32 s23, {M1FT}, 8')
    for j in range(16):
        r = 96 + 2 * j
        r_.op(f'buffer_load_dwordx2 v[{r}:{r+1}], v1, s[60:63], s23 offen offset:{j*16}')
    return r_.ops


def bias_unpack_ops():
    ops = []
    for j in range(32):
        src = 96 + j
        lo, hi = 64 + 2 * j, 65 + 2 * j
        if hi == src:
            ops.append(f'v_lshlrev_b32 v{lo}, 16, v{src}')
            ops.append(f'v_and_b32 v{hi}, 0xffff0000, v{src}')
        else:
            ops.append(f'v_and_b32 v{hi}, 0xffff0000, v{src}')
            ops.append(f'v_lshlrev_b32 v{lo}, 16, v{src}')
    return ops


G_WF, G_XF = 192, 128
G_R, G_P, G_DX, G_L = 8, 6, 16, 6


class GP:
    def __init__(self, name, st, ldw, nst, w_is_a, acc):
        self.name, self.st, self.ldw, self.nst, self.w_is_a, self.acc = name, st, ldw, nst, w_is_a, acc

    def dma(self, stage):
        return dma_w(self.st, self.name, stage, stage % G_R, 64 * self.ldw)

    def xload(self, t):
        r = G_XF + 4 * (t % G_DX)
        st = self.st
        ops = [f'buffer_load_dwordx4 a[{r}:{r+3}], v{VL16}, s[{st.sx}:{st.sx+3}], {st.sox} offen offset:{(t%4)*1024} sc1']
        if t % 4 == 3:
            ops.append(f's_add_u32 {st.sox}, {st.sox}, 4096')
        return ops

    def wread(self, f):
        t, mb = f // 4, f % 4
        stg, kk = t // 4, t % 4
        slot = stg % G_R
        va = (VGA if slot < 4 else VGA2)[mb]
        off = (slot % 4) * 16384 + kk * 4096
        r = G_WF + 4 * (f % 8)
        return [f'ds_read_b64_tr_b16 a[{r}:{r+1}], v{va} offset:{off}',
                (f'ds_read_b64_tr_b16 a[{r+2}:{r+3}], v{va} offset:{off+2048}', dict(tag=(self.name, 'wf', f)))]

    def mfma(self, f, czero=False):
        t, mb = f // 4, f % 4
        wr = G_WF + 4 * (f % 8)
        xr = G_XF + 4 * (t % G_DX)
        acc = self.acc + 16 * mb
        wa, xa = f'a[{wr}:{wr+3}]', f'a[{xr}:{xr+3}]'
        a, b = (wa, xa) if self.w_is_a else (xa, wa)
        c = '0' if czero else f'v[{acc}:{acc+15}]'
        return f'v_mfma_f32_32x32x16_bf16 v[{acc}:{acc+15}], {a}, {b}, {c}'


def g_body(k, g, it, shadow=None, sh_stop=100, czero=False, early_dma=None, tail=None, hooks=None, pub=None):
    nf = g.nst * 16
    pending = list(early_dma or [])
    shadow = shadow or []
    si = 0
    for fb in range(128):
        f = it * 128 + fb
        nd = [(g.name, 'wf', f + 1)] if f % 2 == 0 else None
        k.op(g.mfma(f, czero and f < 4), need=nd)
        if hooks and fb in hooks:
            hooks[fb]()
        fn_ = f + G_L
        if fn_ % 16 == 0:
            stg = fn_ // 16
            if stg < g.nst or tail is None:
                k.need([(g.name, stg, q) for q in range(4)])
            else:
                k.need(tail['need'](stg - g.nst))
            if pub and fb == 122:
                k.need(pub[0])
            k.op('s_barrier')
            if pub and fb == 122:
                flag_store(k, pub[1])
            ns = stg + G_P
            if ns < g.nst or tail is None:
                pending += g.dma(ns)
            else:
                pending += tail['dma'](ns - g.nst) or []
        if pending and isinstance(pending[0], str) and ' m0,' in pending[0]:
            k._do(pending.pop(0))
        if fn_ < nf or tail is None:
            rd = g.wread(fn_)
        else:
            rd = tail['wread'](fn_ - nf) or ['s_nop 0']
        for o in rd:
            k._do(o)
        if f % 4 == 3:
            tn = f // 4 + G_DX
            if tn < g.nst * 4 or tail is None:
                xo = g.xload(tn)
            else:
                xo = tail['x'](tn - g.nst * 4) or []
            for o in xo:
                k._do(o)
        elif pending and (f % 4 == 1 or len(pending) > 6 or fb >= 122):
            k._do(pending.pop(0))
            if pending and isinstance(pending[0], str) and ' m0,' not in pending[0]:
                k._do(pending.pop(0))
        tgt = min(len(shadow), (len(shadow) * (fb + 1)) // sh_stop)
        while si < tgt:
            k._do(shadow[si])
            si += 1
    assert not pending, pending
    assert si == len(shadow)


def g_loop(k, g, it0, n, chk=None):
    for it in k.loop(n, CNT, g.name):
        hooks = {}
        if chk is not None:
            l2 = k.newlabel('c2')
            k.raw(f's_cmp_eq_u32 {CNT}, {chk-1}')
            k.raw(f's_cbranch_scc0 {l2}')
            k.raw(f'v_cmp_ne_u32 vcc, {NONCE}, v{VFV}')
            k.raw(f's_cbranch_vccz {l2}')
            k.raw(f's_call_b64 {RET2}, L_poll1')
            k.label(l2)

            def issue():
                l1 = k.newlabel('c1')
                k.raw(f's_cmp_eq_u32 {CNT}, {chk}')
                k.raw(f's_cbranch_scc0 {l1}')
                k.raw(f'buffer_load_dword v{VFV}, v{VFL}, s[{SFL}:{SFL+3}], 0 offen sc1')
                k.label(l1)
            hooks[48] = issue
        g_body(k, g, it0 + it, hooks=hooks)


def post_m_ops(acc, temps):
    r_ = Rec()
    r_.op(f's_lshl_b32 s21, {M1DT}, 2')
    r_.op(f's_add_u32 s21, s21, {WAVE}')
    r_.op(f's_mul_i32 s22, s21, {224*1024}')
    r_.op(f's_add_u32 s22, s22, {WS_U}')
    r_.op(f's_mul_i32 s21, {HASM}, {224*1024}')
    srd_off(r_, SST, PWS, 's22', 's21')
    r_.op(f'v_mov_b32 v35, {hx(GELU_C0)}')
    r_.op(f's_mov_b32 s23, {hx(GELU_C1)}')
    r_.op(f's_lshl_b32 s65, {M1FT}, 13')
    tags = []
    for h8 in range(8):
        b0 = acc + 8 * h8
        for g4 in range(2):
            xs = [b0 + 4 * g4 + i for i in range(4)]
            for x, t in zip(xs, temps):
                r_.op(f'v_mul_f32 v{t}, v{x}, v{x}')
            for x, t in zip(xs, temps):
                r_.op(f'v_fma_f32 v{t}, v{t}, s23, v35')
            for x, t in zip(xs, temps):
                r_.op(f'v_mul_f32 v{t}, v{t}, v{x}')
            for x, t in zip(xs, temps):
                r_.op(f'v_exp_f32 v{t}, v{t}')
            for x, t in zip(xs, temps):
                r_.op(f'v_add_f32 v{t}, 1.0, v{t}')
            for x, t in zip(xs, temps):
                r_.op(f'v_rcp_f32 v{t}, v{t}')
            for x, t in zip(xs, temps):
                r_.op(f'v_mul_f32 v{x}, v{x}, v{t}')
            r_.op(f'v_cvt_pk_bf16_f32 v{b0+2*g4}, v{xs[0]}, v{xs[1]}')
            r_.op(f'v_cvt_pk_bf16_f32 v{b0+2*g4+1}, v{xs[2]}, v{xs[3]}')
        va = VL16 if h8 < 4 else VL16B
        r_.op(f'buffer_store_dwordx4 v[{b0}:{b0+3}], v{va}, s[{SST}:{SST+3}], s65 offen offset:{(h8%4)*1024} sc1',
              tag=('ust', h8))
        tags.append(('ust', h8))
    return r_.ops, tags


def post_q_ops():
    r_ = Rec()
    for qb in range(2):
        r_.op(f'v_mov_b32 v{36+qb}, v{LS[qb]}')
    r_.op(f's_lshl_b32 s21, {QT}, 3')
    r_.op(f's_lshl_b32 s22, {WAVE}, 1')
    for qb in range(2):
        r_.op(f'v_permlane32_swap_b32 v{LS[qb]}, v{36+qb}')
    r_.op('s_add_u32 s21, s21, s22')
    for qb in range(2):
        r_.op(f'v_add_f32 v{LS[qb]}, v{LS[qb]}, v{36+qb}')
    for qb in range(2):
        r_.op(f'v_rcp_f32 v{LS[qb]}, v{LS[qb]}')
    r_.op('s_lshl_b32 s22, s21, 18')
    r_.op(f's_add_u32 s22, s22, {WS_O}')
    srd_off(r_, SST, PWS, 's22', 2 * 262144)
    r_.op(f's_lshl_b32 s65, {HEAD}, 13')
    r_.op('s_add_u32 s23, s65, 262144')
    r_.op(f's_lshl_b32 s3, {QT}, 5')
    r_.op(f's_add_u32 s3, s3, {HEAD}')
    r_.op('s_lshl_b32 s3, s3, 5')
    r_.op(f's_add_u32 s101, s3, {FL_O}')
    tags = []
    n = 0
    for mb in range(4):
        for qb in range(2):
            o = (mb * 2 + qb) * 16
            for half in range(2):
                T = 128 + (n % 8) * 8
                P = 192 + (n % 8) * 4
                for i in range(8):
                    r_.op(f'v_accvgpr_read_b32 v{T+i}, a{o+8*half+i}')
                for i in range(8):
                    r_.op(f'v_mul_f32 v{T+i}, v{T+i}, v{LS[qb]}')
                for j in range(4):
                    r_.op(f'v_cvt_pk_bf16_f32 v{P+j}, v{T+2*j}, v{T+2*j+1}')
                ks = 2 * mb + half
                so = 's65' if qb == 0 else 's23'
                va = VL16 if ks < 4 else VL16B
                r_.op(f'buffer_store_dwordx4 v[{P}:{P+3}], v{va}, s[{SST}:{SST+3}], {so} offen offset:{(ks%4)*1024} sc1',
                      tag=('ost', n))
                tags.append(('ost', n))
                n += 1
    return r_.ops, tags


Q_ACC, Q_WF, Q_XF, Q_DX, Q_L = 128, 192, 0, 8, 4
QF = 128
SB = [128, 160]
CI = 192
PB = 224
FR = 192
LA = 4
LDQ = HQ * DH * 2


class QP:
    def __init__(self, st):
        self.st = st

    def dma(self, stage):
        return dma_w(self.st, 'q', stage, stage % 4, 64 * LDQ)

    def xload1(self, t, qb):
        r = Q_XF + 8 * (t % Q_DX) + 4 * qb
        sx = self.st.sx if qb == 0 else SX2
        ops = [f'buffer_load_dwordx4 a[{r}:{r+3}], v{VL16}, s[{sx}:{sx+3}], {self.st.sox} offen offset:{(t%4)*1024} sc1']
        if t % 4 == 3 and qb == 1:
            ops.append(f's_add_u32 {self.st.sox}, {self.st.sox}, 4096')
        return ops

    def wread(self, f):
        t, mb = f // 4, f % 4
        stg, kk = t // 4, t % 4
        off = (stg % 4) * 16384 + kk * 4096
        r = Q_WF + 4 * (f % 8)
        return [f'ds_read_b64_tr_b16 a[{r}:{r+1}], v{VAQ[mb]} offset:{off}',
                f'ds_read_b64_tr_b16 a[{r+2}:{r+3}], v{VAQ[mb]} offset:{off+1024}']

    def mfma(self, f, qb, czero=False):
        t, mb = f // 4, f % 4
        wr = Q_WF + 4 * (f % 8)
        xr = Q_XF + 8 * (t % Q_DX) + 4 * qb
        acc = Q_ACC + (mb * 2 + qb) * 16
        c = '0' if czero else f'v[{acc}:{acc+15}]'
        return f'v_mfma_f32_32x32x16_bf16 v[{acc}:{acc+15}], a[{wr}:{wr+3}], a[{xr}:{xr+3}], {c}'


def q_body(k, q, it, shadow=None, sh_stop=52, czero=False, pub=None):
    pending = []
    xp = []
    shadow = shadow or []
    si = 0

    def shade(n):
        nonlocal si
        tgt = min(len(shadow), (len(shadow) * n) // (2 * sh_stop))
        while si < tgt:
            k._do(shadow[si])
            si += 1
    for fb in range(64):
        f = it * 64 + fb
        k.op(q.mfma(f, 0, czero and f < 4))
        fn = f + Q_L
        if fn % 16 == 0:
            stg = fn // 16
            k.need([('q', stg, j) for j in range(4)])
            if pub and fb == 60:
                k.need(pub[0])
            k.op('s_barrier')
            if pub and fb == 60:
                flag_store(k, pub[1])
            pending += q.dma(stg + 2)
            k._do(pending.pop(0))
        rd = q.wread(fn)
        k._do(rd[0])
        if xp:
            run(k, xp)
            xp = []
        shade(2 * fb + 1)
        k.op(q.mfma(f, 1, czero and f < 4))
        k._do(rd[1])
        if f % 4 == 3:
            run(k, q.xload1(f // 4 + Q_DX, 0))
            xp = q.xload1(f // 4 + Q_DX, 1)
            if fb == 63:
                run(k, xp)
                xp = []
        elif pending:
            k._do(pending.pop(0))
            if pending and isinstance(pending[0], str):
                k._do(pending.pop(0))
            if fb >= 60 and pending:
                k._do(pending.pop(0))
                if pending and isinstance(pending[0], str):
                    k._do(pending.pop(0))
        shade(2 * fb + 2)
    assert not pending and not xp and si == len(shadow)


def maxops(b1):
    ops = []
    for step in range(8):
        for qb in range(2):
            s = SB[b1 % 2] + 16 * qb
            if step == 0:
                ops.append(f'v_max3_f32 v{TM[qb]}, v{s}, v{s+1}, v{s+2}')
            elif step < 7:
                ops.append(f'v_max3_f32 v{TM[qb]}, v{TM[qb]}, v{s+1+2*step}, v{s+2+2*step}')
            else:
                ops.append(f'v_max_f32 v{TM[qb]}, v{TM[qb]}, v{s+15}')
    return ops


def attention(k, extras):
    def qcvt(ks):
        ops = []
        mb, hh = ks // 2, ks % 2
        for qb in range(2):
            acc = Q_ACC + (mb * 2 + qb) * 16 + 8 * hh
            for j in range(4):
                ops.append(f'v_cvt_pk_bf16_f32 v{36+j}, v{acc+2*j}, v{acc+2*j+1}')
            for j in range(4):
                ops.append(f'v_accvgpr_write_b32 a{QF + (qb*8+ks)*4 + j}, v{36+j}')
        return ops

    def kvread(b, j):
        sp = b + 1
        r = FR + 4 * (j % 16)
        so = (sp % 4) * 16384
        if j < 8:
            return [f'ds_read_b128 a[{r}:{r+3}], v{VK[j]} offset:{so}']
        kk, mb = (j - 8) // 4, (j - 8) % 4
        return [f'ds_read_b64_tr_b16 a[{r}:{r+1}], v{VV[mb]} offset:{so + kk*4096}',
                f'ds_read_b64_tr_b16 a[{r+2}:{r+3}], v{VV[mb]} offset:{so + kk*4096 + 2048}']

    def qk(b1, ks, qb, first_zero=False):
        s = SB[b1 % 2] + 16 * qb
        r = FR + 4 * ks
        q = QF + (qb * 8 + ks) * 4
        if ks == 0:
            c = '0' if first_zero else f'v[{CI+16*qb}:{CI+16*qb+15}]'
        else:
            c = f'v[{s}:{s+15}]'
        return f'v_mfma_f32_32x32x16_bf16 v[{s}:{s+15}], a[{r}:{r+3}], a[{q}:{q+3}], {c}'

    def pv(kk, mb, qb, zero=False):
        o = (mb * 2 + qb) * 16
        r = FR + 4 * (8 + kk * 4 + mb)
        p = PB + (qb * 2 + kk) * 4
        c = '0' if zero else f'a[{o}:{o+15}]'
        return f'v_mfma_f32_32x32x16_bf16 a[{o}:{o+15}], a[{r}:{r+3}], v[{p}:{p+3}], {c}'

    k.need([('kv', sp, q) for sp in range(2) for q in range(4)])
    for j in range(8):
        run(k, kvread(-1, j))
    run(k, dma_kv(2))
    run(k, dma_kv(3))
    for ks in range(4):
        for o in qcvt(ks):
            k.op(o)
    k.op('s_nop 0')
    for ks in range(8):
        cv = qcvt(ks + 4) if ks + 4 < 8 else []
        for qb in range(2):
            k.op(qk(0, ks, qb, True))
            for o in cv[8 * qb: 8 * qb + 8]:
                k.op(o)
        if ks >= 4:
            run(k, kvread(0, ks - 4))
    k.op(f'v_mov_b32 v{LS[0]}, 0')
    k.op(f'v_mov_b32 v{LS[1]}, 0')
    k.op('s_nop 7')
    k.op('s_nop 1')
    for o in maxops(0):
        k.op(o)
    for qb in range(2):
        k.op(f'v_mov_b32 v{36+qb}, v{TM[qb]}')
    k.op('s_nop 1')
    for qb in range(2):
        k.op(f'v_permlane32_swap_b32 v{TM[qb]}, v{36+qb}')
    k.op('s_nop 0')
    for qb in range(2):
        k.op(f'v_max_f32 v{TM[qb]}, v{TM[qb]}, v{36+qb}')
    for qb in range(2):
        for i in range(16):
            k.op(f'v_sub_f32 v{CI+16*qb+i}, 0, v{TM[qb]}')
    for qb in range(2):
        for i in range(16):
            k.op(f'v_sub_f32 v{SB[0]+16*qb+i}, v{SB[0]+16*qb+i}, v{TM[qb]}')
    stamp(k, 6)

    for b in range(16):
        last = b == 15
        sb = SB[b % 2]
        ex = []
        for kk in range(2):
            for qb in range(2):
                for j in range(4):
                    a0 = sb + 16 * qb + 8 * kk + 2 * j
                    ex.append(f'v_exp_f32 v{a0}, v{a0}')
                    ex.append(f'v_exp_f32 v{a0+1}, v{a0+1}')
                    ex.append(('cvt', f'v_cvt_pk_bf16_f32 v{PB + (qb*2+kk)*4 + j}, v{a0}, v{a0+1}', a0, qb))
        seq = []
        held = None
        for e in ex:
            if isinstance(e, tuple):
                if held is not None:
                    seq.append(held)
                held = e
            else:
                seq.append(e)
                if held is not None:
                    seq.append(held)
                    held = None
        if held is not None:
            seq.append('s_nop 0')
            seq.append(held)
        slots = [[] for _ in range(32)]
        adds = []
        nseq = len(seq)
        nsl = 23
        for i, e in enumerate(seq):
            sl = i * nsl // nseq
            if isinstance(e, tuple):
                slots[sl].append(e[1])
                adds.append((sl + 1, f'v_add_f32 v{LS[e[3]]}, v{LS[e[3]]}, v{e[2]}'))
                adds.append((sl + 1, f'v_add_f32 v{LS[e[3]]}, v{LS[e[3]]}, v{e[2]+1}'))
            else:
                slots[sl].append(e)
        ai = 0
        for sl in range(32):
            n = 1 if sl < 23 else 2
            if last:
                n = 0 if sl < 16 else 2
            while n > 0 and ai < len(adds) and adds[ai][0] <= sl:
                slots[sl].append(adds[ai][1])
                ai += 1
                n -= 1
        while ai < len(adds):
            slots[31].append(adds[ai][1])
            ai += 1
        if not last:
            mo = maxops(b + 1)
            for i, o in enumerate(mo):
                slots[23 + i // 2].append(o)
            slots[31].append(f'v_max_f32 v{TM[2]}, v{TM[0]}, v{TM[1]}')
            slots[31].append(f'v_cmp_lt_f32 vcc, {STHR}, v{TM[2]}')
        xs = [[] for _ in range(32)]
        for (lo, hi, items) in extras.get(b, []):
            for i, it in enumerate(items):
                xs[lo + (i * (hi - lo)) // len(items)].append(it)
        pending = []
        for sl in range(32):
            j = sl // 2
            qb = sl % 2
            if sl < 16:
                if not last:
                    k.op(qk(b + 1, j, qb))
            else:
                kk, mb = (j - 8) // 4, (j - 8) % 4
                k.op(pv(kk, mb, qb, b == 0 and kk == 0))
            jn = j + LA
            bn = b
            if jn >= 16:
                jn -= 16
                bn = b + 1
            skip = (bn == 15 and jn < 8) or bn > 15
            if qb == 0 and jn == 0 and bn <= 15:
                k.need([('kv', bn + 1, q) for q in range(4)])
                k.op('s_barrier')
                if bn + 3 <= 16:
                    pending += dma_kv(bn + 3)
            if not skip:
                rd = kvread(bn, jn)
                if len(rd) == 2:
                    k._do(rd[qb])
                elif qb == 0:
                    k._do(rd[0])
            for it in xs[sl]:
                for o in it:
                    k._do(o)
            for o in slots[sl]:
                k.op(o)
            if pending:
                k._do(pending.pop(0))
                if pending and isinstance(pending[0], str):
                    k._do(pending.pop(0))
        assert not pending
        if not last:
            lab = k.newlabel('norescale')
            k.op(f's_cbranch_vccz {lab}')
            k.op(f's_call_b64 {RET2}, L_q_rescale{(b+1)%2}')
            k.label(lab)


def gen_q_rescale(k):
    for par in range(2):
        sb = SB[par]
        k.label(f'L_q_rescale{par}')
        k.op('s_nop 15')
        for qb in range(2):
            k.op(f'v_mov_b32 v{36+qb}, v{TM[qb]}')
        k.op('s_nop 1')
        for qb in range(2):
            k.op(f'v_permlane32_swap_b32 v{TM[qb]}, v{36+qb}')
        k.op('s_nop 0')
        for qb in range(2):
            k.op(f'v_max3_f32 v{TM[qb]}, v{TM[qb]}, v{36+qb}, 0')
        for qb in range(2):
            k.op(f'v_sub_f32 v{36+qb}, 0, v{TM[qb]}')
        for qb in range(2):
            k.op(f'v_exp_f32 v{36+qb}, v{36+qb}')
        for qb in range(2):
            for i in range(16):
                k.op(f'v_sub_f32 v{sb+16*qb+i}, v{sb+16*qb+i}, v{TM[qb]}')
        k.op('s_branch L_q_rescale_c')
    k.label('L_q_rescale_c')
    for qb in range(2):
        for i in range(16):
            k.op(f'v_sub_f32 v{CI+16*qb+i}, v{CI+16*qb+i}, v{TM[qb]}')
        k.op(f'v_mul_f32 v{LS[qb]}, v{LS[qb]}, v{36+qb}')
    for mb in range(4):
        for qb in range(2):
            o = (mb * 2 + qb) * 16
            for i in range(16):
                k.op(f'v_accvgpr_read_b32 v{240+i}, a{o+i}')
            for i in range(16):
                k.op(f'v_mul_f32 v{240+i}, v{240+i}, v{36+qb}')
            for i in range(16):
                k.op(f'v_accvgpr_write_b32 a{o+i}, v{240+i}')
    k.op('s_nop 3')
    k.op(f's_setpc_b64 {RET2}')


def gather_item(ptr, nbytes, add):
    r_ = Rec()
    srd_off(r_, 60, ptr, 0, nbytes)
    r_.op(f's_lshl_b32 s64, {GID}, 13')
    if add:
        r_.op(f's_add_u32 s64, s64, {add}')
    r_.op(f'buffer_load_dword v{VDUM}, v{VL128}, s[60:63], s64 offen', nowait=True)
    return r_.ops


def chunks(ops, n):
    return [ops[i:i + n] for i in range(0, len(ops), n)]


def att_extras(k, g, setup_fn, nflag, more=None):
    ex = {}
    ex[1] = [(2, 3, [gather_item(PW2, S * F * 2, 0)])]
    ex[4] = [(2, 3, [gather_item(PW2, S * F * 2, 8 * MB)])]
    ex[7] = [(2, 3, [gather_item(PWO, 8 * MB, 0)])]
    r_ = Rec()
    setup_fn(r_)
    ex[9] = [(0, 22, chunks(r_.ops, 2))]
    ex[10] = [(2, 3, [[lambda: flag_issue(k, nflag)]])]
    ex.setdefault(11, []).append((0, 22, dma_items(g.dma(0)) + dma_items(g.dma(1))))
    ex.setdefault(12, []).append((0, 22, dma_items(g.dma(2)) + dma_items(g.dma(3))))
    ex.setdefault(13, []).append((4, 5, [[lambda: flag_check(k, nflag)]]))
    ex.setdefault(14, []).append((16, 32, [g.xload(t) for t in range(6)]))
    ex.setdefault(15, []).append((0, 20, [g.xload(t) for t in range(6, 16)]))
    for b, lst in (more or {}).items():
        ex.setdefault(b, []).extend(lst)
    return ex


def q_to_g(k, g, czero, late_fn=None):
    k.need([(g.name, 0, q) for q in range(4)])
    k.op('s_barrier')
    stamp(k, 7)
    for f in range(G_L):
        run(k, g.wread(f))
    ops, tags = post_q_ops()
    if late_fn:
        r_ = Rec()
        late_fn(r_)
        ops = ops + r_.ops
    for o in ops[:40]:
        k._do(o)
    early = g.dma(4) + g.dma(5) + g.dma(6)
    g_body(k, g, 0, shadow=ops[40:], sh_stop=96, czero=czero, early_dma=early, pub=(tags, 's101'))


def gen_class0(k):
    k.label('L_c0')
    q = QP(SETA)
    m = GP('m', SETB, F * 2, S // 64, True, 64)
    p = GP('p', SETA, S * 2, F // 64, False, 128)
    for st in range(3):
        for j in range(4):
            k.pretag(('q', st, j))
    run(k, dma_kv(0))
    run(k, dma_kv(1))
    k.op(f'v_and_b32 v{VFL}, 31, v{VLANE}')
    k.op(f'v_lshlrev_b32 v{VFL}, 5, v{VFL}')
    k.op(f's_lshl_b32 s21, {QT}, 10')
    k.op(f'v_add_u32 v{VFL}, s21, v{VFL}')
    wg_poll(k, 1)
    for t in range(Q_DX):
        for qb in range(2):
            run(k, q.xload1(t, qb))
    for f in range(Q_L):
        run(k, q.wread(f))
    for i in range(128):
        k.op(f'v_mov_b32 v{Q_ACC+i}, 0')
    stamp(k, 4)
    for it in k.loop(4, CNT, 'qproj'):
        q_body(k, q, it)
    stamp(k, 5)

    def setup(r_):
        setup_m(r_, SETB)
        flags_ln_all(r_)
    un = bias_unpack_ops()
    more = {2: [(4, 22, chunks(bias_load_ops(), 2))],
            5: [(0, 22, chunks(un[:22], 1))], 6: [(0, 22, chunks(un[22:44], 1))], 8: [(0, 22, chunks(un[44:], 1))]}
    attention(k, att_extras(k, m, setup, 4, more))
    q_to_g(k, m, False)
    stamp(k, 8)
    g_loop(k, m, 1, 2)
    setup_mlp2(k, SETA)
    flag_issue(k, 1)
    tail = dict(dma=p.dma, x=p.xload, wread=p.wread, need=lambda s: [('p', s, j) for j in range(4)])
    g_body(k, m, 3, tail=tail, hooks={60: lambda: flag_check(k, 1)})
    stamp(k, 9)
    ops, tags = post_m_ops(64, [192, 193, 194, 195])
    r_ = Rec()
    late_mlp2(r_)
    srd_off(r_, 60, PB2, 0, S * 2)
    r_.op(f'v_and_b32 v1, 31, v{VLANE}')
    r_.op('v_lshlrev_b32 v1, 1, v1')
    r_.op(f's_lshl_b32 s21, {P3ST}, 8')
    for nb in range(4):
        r_.op(f'buffer_load_ushort v{224+nb}, v1, s[60:63], s21 offen offset:{nb*64}')
    g_body(k, p, 0, shadow=r_.ops + ops, sh_stop=104, czero=True, pub=(tags, UFLAG))
    stamp(k, 12)
    g_loop(k, p, 1, 6, chk=6)
    stamp(k, 13)
    k.op(f's_lshl_b32 s22, {TILE}, 15')
    k.op(f's_lshl_b32 s21, {WAVE}, 13')
    k.op('s_add_u32 s22, s22, s21')
    k.op(f's_add_u32 s22, s22, {WS_G}')
    srd_off(k, SST, PWS, 's22', 8192)
    k.op(f's_mov_b32 s22, {hx(-math.log2(math.e))}')
    for nb in range(4):
        k.op(f'v_lshlrev_b32 v{224+nb}, 16, v{224+nb}')
    T = list(range(192, 200))
    for h8 in range(8):
        nb = h8 // 2
        xs = [128 + 8 * h8 + i for i in range(8)]
        for j in range(4):
            k.op(f'v_cvt_pk_bf16_f32 v{T[j]}, v{xs[2*j]}, v{xs[2*j+1]}')
        for j in range(4):
            k.op(f'v_lshlrev_b32 v{xs[2*j]}, 16, v{T[j]}')
            k.op(f'v_and_b32 v{xs[2*j+1]}, 0xffff0000, v{T[j]}')
        for x in xs:
            k.op(f'v_add_f32 v{x}, v{x}, v{224+nb}')
        for j in range(4):
            k.op(f'v_cvt_pk_bf16_f32 v{T[j]}, v{xs[2*j]}, v{xs[2*j+1]}')
        for j in range(4):
            k.op(f'v_lshlrev_b32 v{xs[2*j]}, 16, v{T[j]}')
            k.op(f'v_and_b32 v{xs[2*j+1]}, 0xffff0000, v{T[j]}')
        for x, t in zip(xs, T):
            k.op(f'v_mul_f32 v{t}, s22, v{x}')
        for x, t in zip(xs, T):
            k.op(f'v_exp_f32 v{t}, v{t}')
        for x, t in zip(xs, T):
            k.op(f'v_add_f32 v{t}, 1.0, v{t}')
        for x, t in zip(xs, T):
            k.op(f'v_rcp_f32 v{t}, v{t}')
        for x, t in zip(xs, T):
            k.op(f'v_mul_f32 v{x}, v{x}, v{t}')
        for j in range(4):
            k.op(f'v_cvt_pk_bf16_f32 v{xs[j]}, v{xs[2*j]}, v{xs[2*j+1]}')
        va = VL16 if h8 < 4 else VL16B
        k.op(f'buffer_store_dwordx4 v[{xs[0]}:{xs[3]}], v{va}, s[{SST}:{SST+3}], 0 offen offset:{(h8%4)*1024} sc1')
    k.op(f's_lshl_b32 s21, {TILE}, 5')
    k.op(f's_add_u32 s21, s21, {FL_G}')
    k.wait_all()
    k.op('s_barrier')
    flag_store(k, 's21')
    stamp(k, 15)
    stamp_dump(k)
    k.op('s_endpgm')


def gen_class1(k):
    k.label('L_c1')
    m = GP('m', SETA, F * 2, S // 64, True, 64)
    q = QP(SETB)
    p = GP('p', SETA, D * 2, HQ * DH // 64, True, 64)
    for st in range(3):
        for j in range(4):
            k.pretag(('m', st, j))
    k.op(f's_cmp_eq_u32 {HASM}, 0')
    k.op('s_cbranch_scc1 L_c1_pf')
    run(k, bias_load_ops())
    flags_ln_all(k)
    wg_poll(k, 4)
    for t in range(4):
        run(k, m.xload(t))
    for st in range(3, G_P + 1):
        if st < 6:
            for t in range(4 * (st - 2), 4 * (st - 1)):
                run(k, m.xload(t))
        run(k, m.dma(st))
    for f in range(G_L):
        run(k, m.wread(f))
    for o in bias_unpack_ops():
        k.op(o)
    stamp(k, 8)
    g_loop(k, m, 0, 3)

    def tdma(s):
        if s < 3:
            return q.dma(s)
        if s in (4, 5):
            return dma_kv(s - 4)
        return None
    tail = dict(dma=tdma, x=lambda t: q.xload1(t // 2, t % 2), wread=lambda f: None,
                need=lambda s: [('q', s, j) for j in range(4)])
    g_body(k, m, 3, tail=tail)
    stamp(k, 9)
    k.label('L_c1_q')
    for f in range(Q_L):
        run(k, q.wread(f))
    stamp(k, 4)
    ops, tags = post_m_ops(64, [36, 37, 38, 39])
    for o in ops[:14]:
        k._do(o)
    q_body(k, q, 0, shadow=ops[14:], czero=True, pub=(tags, UFLAG))
    for it in k.loop(3, CNT, 'qproj'):
        q_body(k, q, it + 1)
    stamp(k, 5)
    attention(k, att_extras(k, p, lambda r_: setup_oproj(r_, SETA), 1))
    q_to_g(k, p, True, late_oproj)
    stamp(k, 12)
    g_loop(k, p, 1, 6, chk=5)
    r_ = Rec()
    srd_off(r_, 60, PX, 0, S * D * 2)
    r_.op(f'v_and_b32 v35, 31, v{VLANE}')
    r_.op('v_lshlrev_b32 v35, 11, v35')
    r_.op(f'v_lshrrev_b32 v1, 5, v{VLANE}')
    r_.op('v_lshl_add_u32 v35, v1, 3, v35')
    r_.op(f's_lshl_b32 s21, {P3ST}, 2')
    r_.op(f's_add_u32 s21, s21, {WAVE}')
    r_.op('s_lshl_b32 s65, s21, 16')
    r_.op(f's_lshl_b32 s21, {P3DT}, 8')
    r_.op('s_add_u32 s65, s65, s21')
    r_.op(f's_lshl_b32 s21, {TILE}, 5')
    r_.op(f's_add_u32 s21, s21, {FL_G}')
    r_.op(f'v_mov_b32 v{VFL}, s21')
    r_.op(f's_lshl_b32 s22, {TILE}, 15')
    r_.op(f's_lshl_b32 s21, {WAVE}, 11')
    r_.op('s_add_u32 s22, s22, s21')
    r_.op(f's_add_u32 s22, s22, {WS_G}')
    srd_off(r_, SKV, PWS, 's22', 32768)
    srd_off(r_, SST, POUT, 0, S * D * 2)
    r_.op('s_mov_b32 s21, 8192')
    r_.op('s_mov_b32 s22, 16384')
    r_.op('s_mov_b32 s23, 24576')
    xl = [[f'buffer_load_dwordx2 v[{224+2*j}:{225+2*j}], v35, s[60:63], s65 offen offset:{j*16}'] for j in range(16)]
    gso = ['0', 's21', 's22', 's23']
    gl = [[f'buffer_load_dwordx4 v[{160+4*j}:{163+4*j}], v{VL16}, s[{SKV}:{SKV+3}], {gso[j//2]} offen offset:{(j%2)*1024} sc1']
          for j in range(8)]

    def tx(t):
        if t < 8:
            return xl[2 * t] + xl[2 * t + 1]
        return gl[t - 8]
    tail = dict(dma=lambda s: None, x=tx, wread=lambda f: None, need=lambda s: [])
    g_body(k, p, 7, shadow=r_.ops, sh_stop=40, tail=tail,
           hooks={64: lambda: flag_issue(k, 1), 97: lambda: flag_check(k, 1)})
    stamp(k, 13)
    k.op('s_nop 7')
    k.op('s_nop 3')
    A = 64
    T = list(range(192, 208))
    for h8 in range(8):
        xs = [A + 8 * h8 + i for i in range(8)]
        gr = [160 + 4 * h8 + j for j in range(4)]
        xr = [224 + 4 * h8 + j for j in range(4)]
        for j in range(4):
            k.op(f'v_cvt_pk_bf16_f32 v{T[j]}, v{xs[2*j]}, v{xs[2*j+1]}')
        for j in range(4):
            k.op(f'v_lshlrev_b32 v{T[8+2*j]}, 16, v{gr[j]}')
            k.op(f'v_and_b32 v{T[9+2*j]}, 0xffff0000, v{gr[j]}')
        for j in range(4):
            k.op(f'v_lshlrev_b32 v{xs[2*j]}, 16, v{T[j]}')
            k.op(f'v_and_b32 v{xs[2*j+1]}, 0xffff0000, v{T[j]}')
        for j in range(4):
            k.op(f'v_pk_mul_f32 v[{xs[2*j]}:{xs[2*j+1]}], v[{xs[2*j]}:{xs[2*j+1]}], v[{T[8+2*j]}:{T[9+2*j]}]')
        for j in range(4):
            k.op(f'v_lshlrev_b32 v{T[8+2*j]}, 16, v{xr[j]}')
            k.op(f'v_and_b32 v{T[9+2*j]}, 0xffff0000, v{xr[j]}')
        for j in range(4):
            k.op(f'v_cvt_pk_bf16_f32 v{T[j]}, v{xs[2*j]}, v{xs[2*j+1]}')
        for j in range(4):
            k.op(f'v_lshlrev_b32 v{xs[2*j]}, 16, v{T[j]}')
            k.op(f'v_and_b32 v{xs[2*j+1]}, 0xffff0000, v{T[j]}')
        for j in range(4):
            k.op(f'v_pk_add_f32 v[{xs[2*j]}:{xs[2*j+1]}], v[{xs[2*j]}:{xs[2*j+1]}], v[{T[8+2*j]}:{T[9+2*j]}]')
        for j in range(4):
            k.op(f'v_cvt_pk_bf16_f32 v{xr[j]}, v{xs[2*j]}, v{xs[2*j+1]}')
        for j2 in range(2):
            k.op(f'buffer_store_dwordx2 v[{xr[2*j2]}:{xr[2*j2+1]}], v35, s[{SST}:{SST+3}], s65 offen offset:{(2*h8+j2)*16}')
    if STAMPS:
        k.wait_all()
    stamp(k, 15)
    stamp_dump(k)
    k.op('s_endpgm')


def gen_class1_pf(k):
    q = QP(SETB)
    k.label('L_c1_pf')
    k.op('s_bfe_u32 s21, s2, 0x20001')
    k.op('s_lshl_b32 s21, s21, 3')
    k.op('s_bfe_u32 s22, s2, 0x30003')
    k.op('s_add_u32 s21, s21, s22')
    k.op('s_lshl_b32 s21, s21, 2')
    k.op(f's_add_u32 s21, s21, {WAVE}')
    k.op(f'v_lshrrev_b32 v64, 5, v{VLANE}')
    k.op(f'v_and_b32 v65, 31, v{VLANE}')
    k.op('v_lshlrev_b32 v66, 13, v64')
    k.op('v_lshl_add_u32 v66, v65, 7, v66')
    k.op(f'v_mul_u32_u24 v67, {F*2}, v64')
    k.op('v_lshl_add_u32 v68, v65, 7, v67')
    k.op(f'v_min_u32 v65, {2*NEARLY-1}, v65')
    k.op('v_lshl_add_u32 v67, v65, 7, v67')
    srd_off(k, 60, PWQ, 0, 8 * MB)
    srd_off(k, 8, PW1, 0, S * F * 2)
    k.op('s_lshl_b32 s22, s21, 14')
    k.op(f's_mul_i32 s23, s21, {2*F*2}')
    k.op('s_bitcmp1_b32 s21, 6')
    k.op(f's_cselect_b32 s64, s{PV}, s{PK}')
    k.op(f's_cselect_b32 s65, s{PV+1}, s{PK+1}')
    srd_off(k, 12, 64, 0, HKV * SK * DH * 2)
    k.op('s_bfe_u32 s3, s21, 0x20004')
    k.op('s_lshl_b32 s3, s3, 19')
    k.op('s_and_b32 s64, s21, 15')
    k.op('s_lshl_b32 s64, s64, 13')
    k.op('s_add_u32 s64, s64, s3')
    k.op(f's_add_u32 s64, s64, {1536*256}')

    def wq(r, half):
        k.op(f's_add_u32 s3, s22, {r*128*16384 + half*4096}')
        k.op(f'buffer_load_dword v{VDUM}, v66, s[60:63], s3 offen', nowait=True)

    def w1(r, late):
        k.op(f's_add_u32 s3, s23, {r*256*F*2 + (NEARLY*256 if late else 0)}')
        k.op(f'buffer_load_dword v{VDUM}, v{68 if late else 67}, s[8:11], s3 offen', nowait=True)
    for r in range(4):
        wq(r, 0)
        if r > 0:
            w1(2 * r, False)
        w1(2 * r + 1, False)
        if r == 1:
            k.op(f'buffer_load_dword v{VDUM}, v{VL128}, s[12:15], s64 offen', nowait=True)
    for r in range(4):
        wq(r, 1)
    for r in range(8):
        w1(r, True)
    stamp(k, 8)
    k.op(f'v_and_b32 v{VFL}, 31, v{VLANE}')
    k.op(f'v_lshlrev_b32 v{VFL}, 5, v{VFL}')
    k.op(f's_lshl_b32 s21, {QT}, 10')
    k.op(f'v_add_u32 v{VFL}, s21, v{VFL}')
    wg_poll(k, 1)
    for st in range(3):
        run(k, q.dma(st))
    run(k, dma_kv(0))
    run(k, dma_kv(1))
    for t in range(Q_DX):
        for qb in range(2):
            run(k, q.xload1(t, qb))
    k.wait_all()
    k.op('s_barrier')
    stamp(k, 9)
    k.op('s_branch L_c1_q')


def wave_allreduce_add(k, regs, tmps):
    pats = ['quad_perm:[1,0,3,2]', 'quad_perm:[2,3,0,1]', 'row_half_mirror', 'row_mirror']
    for p in pats:
        k.op('s_nop 0')
        for r in regs:
            k.op(f'v_add_f32_dpp v{r}, v{r}, v{r} {p} row_mask:0xf bank_mask:0xf')
    for sw in ('v_permlane16_swap_b32', 'v_permlane32_swap_b32'):
        for r, t in zip(regs, tmps):
            k.op(f'v_mov_b32 v{t}, v{r}')
        k.op('s_nop 0')
        for r, t in zip(regs, tmps):
            k.op(f'{sw} v{r}, v{t}')
        for r, t in zip(regs, tmps):
            k.op(f'v_add_f32 v{r}, v{r}, v{t}')


def gen_entry(k):
    k.op('s_cmp_ge_u32 s2, 256')
    k.op('s_cbranch_scc1 L_end')
    k.op('s_load_dwordx16 s[72:87], s[0:1], 0')
    k.op('s_load_dwordx8 s[88:95], s[0:1], 64')
    k.op('s_load_dwordx2 s[96:97], s[0:1], 96')
    k.op('s_memrealtime s[64:65]')
    k.op('v_lshrrev_b32 v1, 6, v0')
    k.op(f'v_and_b32 v{VLANE}, 63, v0')
    k.op(f'v_readfirstlane_b32 {WAVE}, v1')
    k.op(f'v_lshlrev_b32 v{VL16}, 4, v{VLANE}')
    if STAMPS:
        k.op('v_mov_b32 v62, 0')
        k.op('v_mov_b32 v63, 0')
    k.op('s_lshr_b32 s21, s2, 1')
    k.op('s_lshl_b32 s21, s21, 4')
    k.op('s_and_b32 s22, s2, 1')
    k.op('s_lshl_b32 s22, s22, 2')
    k.op('s_add_u32 s21, s21, s22')
    k.op(f's_and_b32 s22, {WAVE}, 1')
    k.op('s_lshl_b32 s22, s22, 1')
    k.op('s_add_u32 s21, s21, s22')
    k.op(f's_lshr_b32 s22, {WAVE}, 1')
    k.op('s_lshl_b32 s22, s22, 3')
    k.op('s_add_u32 s21, s21, s22')
    k.op('s_lshl_b32 s23, s21, 11')
    k.wait_all(vm=False)
    srd_off(k, 60, PX, 0, S * D * 2)
    RAW = 64
    for r in range(2):
        k.op(f'buffer_load_dwordx4 v[{RAW+8*r}:{RAW+3+8*r}], v{VL16}, s[60:63], s23 offen offset:{r*2048}')
        k.op(f'buffer_load_dwordx4 v[{RAW+4+8*r}:{RAW+7+8*r}], v{VL16}, s[60:63], s23 offen offset:{r*2048+1024}')
    stamp(k, 0)
    srd_off(k, SST, PDBG, 0, 256)
    k.op('v_mov_b32 v35, 0')
    k.op(f's_or_b32 s21, s2, {WAVE}')
    k.op('s_cmp_lg_u32 s21, 0')
    k.op('s_cbranch_scc1 L_nononce')
    k.op('s_or_b32 s64, s64, 1')
    k.op('v_mov_b32 v1, s64')
    k.op('s_mov_b64 exec, 1')
    k.raw(f'buffer_store_dword v1, v35, s[{SST}:{SST+3}], 0 offen sc1')
    k.op('s_mov_b64 exec, -1')
    k.label('L_nononce')
    k.op('s_and_b32 s21, s2, 1')
    k.op('s_bfe_u32 s22, s2, 0x10002')
    k.op('s_bfe_u32 s23, s2, 0x10001')
    k.op('s_lshl_b32 s3, s21, 1')
    k.op('s_add_u32 s3, s3, s22')
    k.op(f's_lshl_b32 {HEAD}, s3, 3')
    k.op(f's_bfe_u32 {P3DT}, s2, 0x30003')
    k.op(f's_add_u32 {HEAD}, {HEAD}, {P3DT}')
    k.op('s_lshl_b32 s23, s23, 2')
    k.op('s_lshr_b32 s3, s2, 6')
    k.op(f's_add_u32 {QT}, s3, s23')
    k.op(f's_bfe_u32 {P3ST}, s2, 0x20001')
    k.op(f's_lshl_b32 {P3ST}, {P3ST}, 2')
    k.op(f's_add_u32 {P3ST}, {P3ST}, s3')
    k.op(f's_lshl_b32 {TILE}, {P3ST}, 3')
    k.op(f's_add_u32 {TILE}, {TILE}, {P3DT}')
    k.op(f's_bfe_u32 {M1DT}, s2, 0x20003')
    k.op(f's_add_u32 {M1DT}, {M1DT}, s23')
    k.op('s_lshr_b32 s3, s2, 5')
    k.op('s_cmp_eq_u32 s21, 0')
    k.op('s_cselect_b32 s23, 8, 6')
    k.op('s_mul_i32 s22, s22, s23')
    k.op(f's_add_u32 {M1FT}, s22, s3')
    k.op('s_cmp_lt_u32 s3, s23')
    k.op(f's_cselect_b32 {HASM}, 1, 0')
    k.op('s_cmp_eq_u32 s21, 0')
    k.op(f's_cselect_b32 s23, {NEARLY}, 0')
    k.op(f's_add_u32 {M1FT}, {M1FT}, s23')
    k.op(f's_lshl_b32 {UFLAG}, {M1DT}, 5')
    k.op(f's_add_u32 {UFLAG}, {UFLAG}, {M1FT}')
    k.op(f's_lshl_b32 {UFLAG}, {UFLAG}, 5')
    k.op(f's_add_u32 {UFLAG}, {UFLAG}, {FL_U}')
    k.op(f's_cmp_eq_u32 {HASM}, 1')
    k.op(f's_cselect_b32 {UFLAG}, {UFLAG}, {FL_DUMMY}')
    k.op(f's_lshl_b32 {M0B}, {WAVE}, 12')
    k.op(f's_lshl_b32 {GID}, s2, 2')
    k.op(f's_add_u32 {GID}, {GID}, {WAVE}')
    k.op(f's_mov_b32 {STHR}, {hx(THR)}')
    k.op(f's_mov_b32 {SOKV}, 0')
    for j in range(1, 4):
        k.op(f's_mov_b32 {FS[j]}, {j*2048}')
    srd_off(k, SFL, PWS, WS_FLAG, 65536)
    L = VLANE
    t0, t1, t2 = 36, 37, 38
    k.op(f'v_lshlrev_b32 v{VL128}, 7, v{L}')
    k.op(f'v_add_u32 v{VL16B}, 4096, v{VL16}')
    k.op(f'v_lshrrev_b32 v{VR4}, 4, v{L}')
    k.op(f'v_bfe_u32 v{t0}, v{L}, 2, 2')
    k.op(f'v_xor_b32 v{t1}, v{t0}, v{VR4}')
    k.op(f'v_lshlrev_b32 v{t1}, 6, v{t1}')
    k.op(f'v_and_b32 v{t2}, 3, v{L}')
    k.op(f'v_lshl_add_u32 v{VSWZ}, v{t2}, 4, v{t1}')
    k.op('s_bitcmp1_b32 s2, 0')
    k.op('s_cbranch_scc1 L_e_m')
    setup_q(k, SETA)
    k.op(f's_mov_b32 {WSTR0}, {64*LDQ}')
    srd_off(k, SETB.sw, PWS, 0, 0)
    srd_off(k, SETB.sx, PWS, 0, 0)
    for v in SETB.vd:
        k.op(f'v_mov_b32 v{v}, 0')
    k.op('s_branch L_e_c')
    k.label('L_e_m')
    setup_m(k, SETA)
    k.op(f's_mul_i32 s{SETA.sw+2}, s{SETA.sw+2}, {HASM}')
    k.op(f's_mov_b32 {WSTR0}, {64*F*2}')
    setup_q(k, SETB)
    k.label('L_e_c')
    for st in range(2):
        run(k, dma_w(SETA, 'w0', st, st, WSTR0))
    k.op(f'v_lshrrev_b32 v{t1}, 5, v{L}')
    k.op(f'v_lshl_add_u32 v{t1}, v{t1}, 2, v{t0}')
    k.op(f'v_lshlrev_b32 v{t1}, 8, v{t1}')
    k.op(f'v_bfe_u32 v39, v{L}, 4, 1')
    k.op(f'v_lshl_add_u32 v{t1}, v39, 5, v{t1}')
    k.op(f'v_lshl_add_u32 v{t1}, v{t2}, 3, v{t1}')
    for mb in range(4):
        k.op(f'v_xor_b32 v1, {mb}, v{t0}')
        k.op(f'v_lshl_add_u32 v{VGA[mb]}, v1, 6, v{t1}')
        k.op(f'v_add_u32 v{VGA2[mb]}, 0x10000, v{VGA[mb]}')
        k.op(f'v_add_u32 v{VV[mb]}, {KVB + 8192}, v{VGA[mb]}')
    k.op(f'v_lshrrev_b32 v{t1}, 5, v{L}')
    k.op(f'v_lshl_add_u32 v{t1}, v{t1}, 3, v{t0}')
    k.op(f'v_lshlrev_b32 v{t1}, 8, v{t1}')
    k.op(f'v_lshl_add_u32 v{t1}, v39, 5, v{t1}')
    k.op(f'v_and_b32 v1, 1, v{L}')
    k.op(f'v_lshl_add_u32 v{t1}, v1, 4, v{t1}')
    k.op(f'v_bfe_u32 v1, v{L}, 1, 1')
    k.op(f'v_lshl_add_u32 v{t1}, v1, 3, v{t1}')
    for mb in range(4):
        k.op(f'v_xor_b32 v1, {mb}, v{t0}')
        k.op(f'v_lshl_add_u32 v{VAQ[mb]}, v1, 6, v{t1}')
    k.op(f'v_and_b32 v{t0}, 31, v{L}')
    k.op(f'v_lshlrev_b32 v{t0}, 8, v{t0}')
    k.op(f'v_add_u32 v{t0}, {KVB}, v{t0}')
    k.op(f'v_and_b32 v{t1}, 15, v{L}')
    k.op(f'v_lshrrev_b32 v{t2}, 5, v{L}')
    k.op(f'v_xor_b32 v{t1}, v{t1}, v{t2}')
    for ks in range(8):
        k.op(f'v_xor_b32 v{t2}, {2*ks}, v{t1}')
        k.op(f'v_lshl_add_u32 v{VK[ks]}, v{t2}, 4, v{t0}')
    k.op(f's_and_b32 s21, {WAVE}, 1')
    k.op('s_lshl_b32 s21, s21, 12')
    k.op(f'v_lshlrev_b32 v{t2}, 8, v{VR4}')
    k.op(f'v_add_u32 v{t2}, s21, v{t2}')
    k.op(f's_cmp_ge_u32 {WAVE}, 2')
    k.op('s_cbranch_scc1 L_q_vw')
    k.op(f'v_and_b32 v{t1}, 15, v{L}')
    k.op(f'v_xor_b32 v{t1}, v{t1}, v{VR4}')
    k.op(f'v_lshlrev_b32 v{t1}, 4, v{t1}')
    k.op(f'v_add_u32 v{t2}, {1536*256}, v{t2}')
    for q in range(4):
        k.op(f'v_xor_b32 v{VD2[q]}, {q*64}, v{t1}')
        k.op(f'v_add_u32 v{VD2[q]}, v{VD2[q]}, v{t2}')
    k.op('s_branch L_q_vw_done')
    k.label('L_q_vw')
    k.op(f'v_add_u32 v{t2}, {(1536-32)*256}, v{t2}')
    for q in range(4):
        k.op(f'v_add_u32 v{VD2[q]}, v{VSWZ}, v{t2}')
    k.label('L_q_vw_done')
    k.op(f's_cmp_ge_u32 {WAVE}, 2')
    k.op(f's_cselect_b32 s60, s{PV}, s{PK}')
    k.op(f's_cselect_b32 s61, s{PV+1}, s{PK+1}')
    k.op(f's_lshr_b32 s21, {HEAD}, 3')
    k.op('s_lshl_b32 s21, s21, 19')
    k.op(f's_sub_u32 s22, {HKV*SK*DH*2}, s21')
    srd_off(k, SKV, 60, 's21', 's22')
    run(k, dma_w(SETA, 'w0', 2, 2, WSTR0))
    k.op(f'buffer_load_dword v39, v35, s[{SST}:{SST+3}], 0 offen sc1')
    stamp(k, 1)
    X = [[80 + 16 * r + i for i in range(16)] for r in range(2)]
    T = [[112 + 16 * r + i for i in range(16)] for r in range(2)]
    SUM, TMP, MEANB, SD, RC = [144, 146], [148, 149], [150, 152], [154, 156], [158, 160]
    S2 = [180, 182, 184, 186]
    XS = 164
    RJ = [(r, j) for j in range(8) for r in range(2)]
    for r in range(2):
        for j in range(8):
            k.op(f'v_lshlrev_b32 v{X[r][2*j]}, 16, v{RAW+8*r+j}')
            k.op(f'v_and_b32 v{X[r][2*j+1]}, 0xffff0000, v{RAW+8*r+j}')
    k.op(f's_mov_b32 s21, {hx(1.0/1024)}')
    k.op(f's_mov_b32 s22, {hx(1e-5)}')
    k.op(f's_mov_b32 s64, {hx(QSCALE)}')

    def pr(a):
        return f'v[{a}:{a+1}]'

    def rb(dst, src):
        for r in range(2):
            k.op(f'v_cvt_pk_bf16_f32 v{dst[r]}, v{src[r]}, v{src[r]}')
        for r in range(2):
            k.op(f'v_and_b32 v{dst[r]}, 0xffff0000, v{dst[r]}')

    def layernorm(final):
        for c in range(4):
            r, hh = c // 2, c % 2
            k.op(f'v_pk_add_f32 {pr(S2[c])}, {pr(X[r][8*hh])}, {pr(X[r][8*hh+2])}')
        for j in (2, 3):
            for c in range(4):
                r, hh = c // 2, c % 2
                k.op(f'v_pk_add_f32 {pr(S2[c])}, {pr(S2[c])}, {pr(X[r][8*hh+2*j])}')
        for r in range(2):
            k.op(f'v_pk_add_f32 {pr(SUM[r])}, {pr(S2[2*r])}, {pr(S2[2*r+1])}')
        for r in range(2):
            k.op(f'v_add_f32 v{SUM[r]}, v{SUM[r]}, v{SUM[r]+1}')
        wave_allreduce_add(k, SUM, TMP)
        for r in range(2):
            k.op(f'v_mul_f32 v{SUM[r]}, s21, v{SUM[r]}')
        for r, j in RJ:
            k.op(f'v_pk_add_f32 {pr(T[r][2*j])}, {pr(X[r][2*j])}, {pr(SUM[r])} op_sel_hi:[1,0] neg_lo:[0,1] neg_hi:[0,1]')
        rb(MEANB, SUM)
        for c in range(4):
            r, hh = c // 2, c % 2
            k.op(f'v_pk_mul_f32 {pr(S2[c])}, {pr(T[r][8*hh])}, {pr(T[r][8*hh])}')
        for j in (1, 2, 3):
            for c in range(4):
                r, hh = c // 2, c % 2
                k.op(f'v_pk_fma_f32 {pr(S2[c])}, {pr(T[r][8*hh+2*j])}, {pr(T[r][8*hh+2*j])}, {pr(S2[c])}')
        for r in range(2):
            k.op(f'v_pk_add_f32 {pr(SUM[r])}, {pr(S2[2*r])}, {pr(S2[2*r+1])}')
        for r in range(2):
            k.op(f'v_add_f32 v{SUM[r]}, v{SUM[r]}, v{SUM[r]+1}')
        xc = []
        for r, j in RJ:
            a = X[r][2 * j]
            xc.append(f'v_pk_add_f32 {pr(a)}, {pr(a)}, {pr(MEANB[r])} op_sel_hi:[1,0] neg_lo:[0,1] neg_hi:[0,1]')
        for r, j in RJ:
            a, b = X[r][2 * j], X[r][2 * j + 1]
            xc.append(f'v_cvt_pk_bf16_f32 v{b}, v{a}, v{b}')
        for r, j in RJ:
            a, b = X[r][2 * j], X[r][2 * j + 1]
            xc.append(f'v_lshlrev_b32 v{a}, 16, v{b}')
            xc.append(f'v_and_b32 v{b}, 0xffff0000, v{b}')
        ch = Rec()
        wave_allreduce_add(ch, SUM, TMP)
        for r in range(2):
            ch.op(f'v_mul_f32 v{SUM[r]}, s21, v{SUM[r]}')
        for dst, src in ((SD, SUM),):
            for r in range(2):
                ch.op(f'v_cvt_pk_bf16_f32 v{dst[r]}, v{src[r]}, v{src[r]}')
            for r in range(2):
                ch.op(f'v_and_b32 v{dst[r]}, 0xffff0000, v{dst[r]}')
        for r in range(2):
            ch.op(f'v_add_f32 v{SD[r]}, s22, v{SD[r]}')
        for r in range(2):
            ch.op(f'v_cvt_pk_bf16_f32 v{SD[r]}, v{SD[r]}, v{SD[r]}')
        for r in range(2):
            ch.op(f'v_and_b32 v{SD[r]}, 0xffff0000, v{SD[r]}')
        for r in range(2):
            ch.op(f'v_sqrt_f32 v{SD[r]}, v{SD[r]}')
        ch.op('s_nop 0')
        for r in range(2):
            ch.op(f'v_cvt_pk_bf16_f32 v{SD[r]}, v{SD[r]}, v{SD[r]}')
        for r in range(2):
            ch.op(f'v_and_b32 v{SD[r]}, 0xffff0000, v{SD[r]}')
        for r in range(2):
            ch.op(f'v_rcp_f32 v{RC[r]}, v{SD[r]}')
        chain = [o for o in ch.ops if o != 's_nop 0']
        k.op(xc[0])
        weave(k, chain, [[o] for o in xc[1:]])
        k.op('s_nop 0')
        for r, j in RJ:
            k.op(f'v_pk_mul_f32 {pr(T[r][2*j])}, {pr(X[r][2*j])}, {pr(RC[r])} op_sel_hi:[1,0]')
        for r, j in RJ:
            x, t = X[r][2 * j], T[r][2 * j]
            k.op(f'v_pk_fma_f32 {pr(x)}, {pr(t)}, {pr(SD[r])}, {pr(x)} op_sel_hi:[1,0,1] neg_lo:[1,0,0] neg_hi:[1,0,0]')
        for r, j in RJ:
            x, t = X[r][2 * j], T[r][2 * j]
            k.op(f'v_pk_fma_f32 {pr(t)}, {pr(x)}, {pr(RC[r])}, {pr(t)} op_sel_hi:[1,0,1]')
        for r, j in RJ:
            k.op(f'v_cvt_pk_bf16_f32 v{RAW+8*r+j}, v{T[r][2*j]}, v{T[r][2*j+1]}')
        if not final:
            for r, j in RJ:
                p = RAW + 8 * r + j
                k.op(f'v_lshlrev_b32 v{X[r][2*j]}, 16, v{p}')
                k.op(f'v_and_b32 v{X[r][2*j+1]}, 0xffff0000, v{p}')

    layernorm(False)
    PITCH = 2048
    k.op(f's_add_u32 s23, {M0B}, {LN_LDS}')
    k.op(f'v_add_u32 v188, s23, v{VL16}')
    for r, j in RJ:
        k.op(f'v_pk_mul_f32 {pr(T[r][2*j])}, {pr(X[r][2*j])}, s[64:65] op_sel_hi:[1,0]')
    for r, j in RJ:
        k.op(f'v_cvt_pk_bf16_f32 v{XS+8*r+j}, v{T[r][2*j]}, v{T[r][2*j+1]}')
    for r in range(2):
        k.op(f'ds_write_b128 v188, v[{XS+8*r}:{XS+3+8*r}] offset:{r*PITCH}')
        k.op(f'ds_write_b128 v188, v[{XS+4+8*r}:{XS+7+8*r}] offset:{r*PITCH + 1024}')
    k.op(f'v_and_b32 v189, 7, v{L}')
    k.op('v_lshlrev_b32 v190, 11, v189')
    k.op(f'v_lshrrev_b32 v191, 3, v{L}')
    k.op('v_lshl_add_u32 v190, v191, 4, v190')
    k.op(f's_lshl_b32 s23, {WAVE}, 9')
    k.op(f's_add_u32 s23, s23, {LN_LDS}')
    k.op('v_add_u32 v190, s23, v190')
    k.op('v_lshlrev_b32 v192, 9, v191')
    k.op(f'v_and_b32 v193, 3, v{L}')
    k.op('v_lshl_add_u32 v192, v193, 4, v192')
    k.op(f'v_bfe_u32 v193, v{L}, 2, 1')
    k.op('v_lshl_add_u32 v192, v193, 7, v192')
    k.op('s_lshr_b32 s3, s2, 2')
    k.op('s_lshl_b32 s3, s3, 16')
    k.op('s_bfe_u32 s65, s2, 0x10001')
    k.op('s_lshl_b32 s65, s65, 8')
    k.op('s_add_u32 s3, s3, s65')
    k.op('s_and_b32 s65, s2, 1')
    k.op('s_lshl_b32 s65, s65, 6')
    k.op('s_add_u32 s3, s3, s65')
    k.op(f's_lshl_b32 s65, {WAVE}, 14')
    k.op('s_add_u32 s3, s3, s65')
    srd_off(k, 60, PWS, 0, 8 * MB)
    k.wait_all(vm=False)
    k.op('s_barrier')
    for ii in range(4):
        k.op(f'ds_read_b128 v[{196+4*ii}:{199+4*ii}], v190 offset:{ii*128}')
    for ii in range(4):
        k.op(f'buffer_store_dwordx4 v[{196+4*ii}:{199+4*ii}], v192, s[60:63], s3 offen sc1')
        k.op('s_add_u32 s3, s3, 4096')
    layernorm(True)
    for r in range(2):
        k.op(f'ds_write_b128 v188, v[{RAW+8*r}:{RAW+3+8*r}] offset:{16384 + r*PITCH}')
        k.op(f'ds_write_b128 v188, v[{RAW+4+8*r}:{RAW+7+8*r}] offset:{16384 + r*PITCH + 1024}')
    k.op(f'v_bfe_u32 v190, v{L}, 2, 2')
    k.op('v_lshlrev_b32 v190, 11, v190')
    k.op(f'v_lshl_add_u32 v190, v{VR4}, 5, v190')
    k.op(f'v_and_b32 v191, 3, v{L}')
    k.op('v_lshl_add_u32 v190, v191, 3, v190')
    k.op('v_add_u32 v190, s23, v190')
    k.op(f'v_lshrrev_b32 v191, 5, v{L}')
    k.op('v_lshlrev_b32 v191, 17, v191')
    k.op(f'v_and_b32 v193, 31, v{L}')
    k.op('v_lshl_add_u32 v191, v193, 4, v191')
    k.op('s_lshl_b32 s22, s2, 9')
    k.op(f's_add_u32 s22, s22, {WS_H}')
    k.op(f's_lshl_b32 s23, {WAVE}, 20')
    k.op('s_add_u32 s22, s22, s23')
    k.wait_all(vm=False)
    k.op('s_barrier')
    for ii in range(4):
        k.op(f'ds_read_b64_tr_b16 v[{96+4*ii}:{97+4*ii}], v190 offset:{16384 + ii*128}')
        k.op(f'ds_read_b64_tr_b16 v[{98+4*ii}:{99+4*ii}], v190 offset:{16384 + ii*128 + 4*PITCH}')
    for ii in range(4):
        k.op(f'buffer_store_dwordx4 v[{96+4*ii}:{99+4*ii}], v191, s[60:63], s22 offen sc1')
        k.op('s_add_u32 s22, s22, 262144')
    stamp(k, 2)
    k.op('s_mov_b32 s64, 0x200000')
    k.op('s_lshl_b32 s21, s2, 5')
    k.wait_all()
    k.label('L_nonce_loop')
    k.op(f'v_readfirstlane_b32 {NONCE}, v39')
    k.op(f's_cmp_lg_u32 {NONCE}, 0')
    k.op('s_cbranch_scc1 L_nonce_ok')
    k.op(f'buffer_load_dword v39, v35, s[{SST}:{SST+3}], 0 offen sc1')
    k.wait_all()
    k.op('s_sub_u32 s64, s64, 1')
    k.op('s_cmp_lg_u32 s64, 0')
    k.op('s_cbranch_scc1 L_nonce_loop')
    k.label('L_nonce_ok')
    k.op('s_barrier')
    flag_store(k, 's21')
    stamp(k, 3)
    k.op('s_bitcmp1_b32 s2, 0')
    k.op('s_cbranch_scc1 L_c1')
    k.op('s_branch L_c0')
    k.label('L_end')
    k.op('s_endpgm')


def assemble():
    head = open('recurrent_scan__sliding_block_cached__mixer_token_mlp__prompt.s.ref').read()
    hl = []
    for line in head.splitlines():
        if line.startswith('; Override'):
            break
        hl.append(line)
    out = '\n'.join(hl) + '\n'
    out += '; @launch grid=(256,1,1) block=(256,1,1) lds=163840\n'
    out += '.amdgcn_target "amdgcn-amd-amdhsa--gfx950"\n.text\n'
    segs = [gen_entry, gen_class0, gen_poll, gen_q_rescale, gen_class1_pf, gen_class1]
    text, desc, stats, n = build_kernel(KNAME, segs, vgpr=512, accum=256, short='mk')
    print(f'{n} lines, dyn {stats}', file=sys.stderr)
    out += text + '.section .rodata,"a"\n' + desc
    return out


if __name__ == '__main__':
    if len(sys.argv) > 2 and sys.argv[2] == 'final':
        STAMPS = False
    open(sys.argv[1] if len(sys.argv) > 1 else 'mk.s', 'w').write(assemble())
```

```python
import sys, struct, math
from asmgen import K, build_kernel

S, D, HQ, HKV, DH, SK, W, F = 2048, 1024, 32, 4, 128, 2048, 512, 3584
KNAME = 'recurrent_scan__sliding_block_cached__mixer_token_mlp__prompt_kernel'
MB = 1 << 20
WS_XN = 0
WS_H = 4 * MB
WS_O = 8 * MB
WS_U = 24 * MB
WS_G = 32 * MB
WS_FLAG = 40 * MB
FL_H, FL_O, FL_U, FL_G, FL_DUMMY, FL_XN = 0, 8192, 16384, 24576, 32768, 40960
PX, PK, PV, PWQ, PWO, PBX, PW1, PB1, PW2, PB2, POUT, PDBG, PWS = [72 + 2 * i for i in range(13)]
NEARLY = 12

STAMPS = True
CODEPF = True
THR = 16.0
QSCALE = math.log2(math.e) / math.sqrt(DH)
GELU_C0 = -2.0 * math.log2(math.e) * math.sqrt(2.0 / math.pi)
GELU_C1 = GELU_C0 * 0.044715

WAVE, M0B, CNT = 's16', 's19', 's20'
SX2, SKV, SST, SFL = 24, 28, 32, 52
HEAD, QT, M1DT, M1FT, P3DT, P3ST, NONCE, SOKV = [f's{i}' for i in range(36, 44)]
RET2 = 's[48:49]'
STHR, WSTR0 = 's50', 's51'
TILE, GID, UFLAG, HASM = 's68', 's69', 's70', 's71'
FS = ['0', 's98', 's99', 's100']
VLANE, VL16 = 2, 3
VAQ = [8, 9, 10, 11]
VD2 = [12, 13, 14, 15]
VK = list(range(16, 24))
VV = [24, 25, 26, 27]
LS = [28, 29]
TM = [30, 31, 32]
VSWZ, VR4 = 33, 34
VGA = [40, 41, 42, 43]
VGA2 = [44, 45, 46, 47]
VF4 = [52, 53, 54, 55]
VL16B = 57
VL128, VDUM, VFL, VFV = 58, 59, 60, 61
LN_LDS = 131072
KVB = 65536


class Set:
    def __init__(self, sw, sx, sow, sox, vd):
        self.sw, self.sx, self.sow, self.sox, self.vd = sw, sx, sow, sox, vd


SETA = Set(8, 12, 's17', 's18', [4, 5, 6, 7])
SETB = Set(4, 44, 's66', 's67', [48, 49, 50, 51])


def f2u(x):
    return struct.unpack('<I', struct.pack('<f', x))[0]


def hx(x):
    return f'0x{f2u(x):08x}'


class Rec:
    def __init__(self):
        self.ops = []

    def op(self, t, **kw):
        if t.startswith('s_addc_u32'):
            self.ops[-1] = [self.ops[-1], t]
            return
        self.ops.append((t, kw) if kw else t)


def srd_off(k, d, plo, off, nrec):
    if off == 0:
        k.op(f's_mov_b32 s{d}, s{plo}')
        k.op(f's_and_b32 s{d+1}, s{plo+1}, 0xffff')
    else:
        k.op(f's_add_u32 s{d}, s{plo}, {off}')
        k.op(f's_addc_u32 s{d+1}, s{plo+1}, 0')
        k.op(f's_and_b32 s{d+1}, s{d+1}, 0xffff')
    k.op(f's_mov_b32 s{d+2}, {nrec}')
    k.op(f's_mov_b32 s{d+3}, 0x00020000')


def stamp(k, i):
    if not STAMPS:
        return
    k.op('s_memtime s[56:57]')
    k.op('s_memrealtime s[58:59]')
    k.wait_all(vm=False)
    k.op(f'v_writelane_b32 v62, s56, {i}')
    k.op(f'v_writelane_b32 v63, s58, {i}')


def stamp_dump(k):
    if not STAMPS:
        return
    lab = k.newlabel('nostamp')
    k.op(f's_cmp_lg_u32 {WAVE}, 0')
    k.op(f's_cbranch_scc1 {lab}')
    srd_off(k, 60, PWS, 64 * MB, MB)
    k.op('s_lshl_b32 s64, s2, 9')
    k.op(f'v_lshlrev_b32 v1, 3, v{VLANE}')
    k.op('buffer_store_dwordx2 v[62:63], v1, s[60:63], s64 offen')
    k.wait_all()
    k.label(lab)


def run(k, ops):
    for o in ops:
        k._do(o)
        if isinstance(o, str) and ' m0,' in o:
            k.op('s_nop 0')


def flag_store(k, off_sreg):
    lab = k.newlabel('nopub')
    k.raw(f's_cmp_lg_u32 {WAVE}, 0')
    k.raw(f's_cbranch_scc1 {lab}')
    k.raw(f'v_mov_b32 v1, {off_sreg}')
    k.raw(f'v_mov_b32 v56, {NONCE}')
    k.raw('s_mov_b64 exec, 1')
    k.raw(f'buffer_store_dword v56, v1, s[{SFL}:{SFL+3}], 0 offen sc1')
    k.raw('s_mov_b64 exec, -1')
    k.raw('s_nop 3')
    k.label(lab)


def flag_issue(k, n):
    for j in range(n):
        k.op(f'buffer_load_dword v{VF4[j]}, v{VFL}, s[{SFL}:{SFL+3}], {FS[j]} offen sc1')


def flag_test(k, n):
    if n == 1:
        k.op(f'v_cmp_ne_u32 vcc, {NONCE}, v{VF4[0]}')
        return
    for j in range(4):
        k.op(f'v_xor_b32 v{VF4[j]}, {NONCE}, v{VF4[j]}')
    k.op(f'v_or3_b32 v{VF4[0]}, v{VF4[0]}, v{VF4[1]}, v{VF4[2]}')
    k.op(f'v_or_b32 v{VF4[0]}, v{VF4[0]}, v{VF4[3]}')
    k.op(f'v_cmp_ne_u32 vcc, 0, v{VF4[0]}')


def flag_check(k, n):
    lab = k.newlabel('fok')
    flag_test(k, n)
    k.raw(f's_cbranch_vccz {lab}')
    k.raw(f's_call_b64 {RET2}, L_poll{n}')
    k.label(lab)


def gen_poll(k):
    for n in (1, 4):
        k.label(f'L_poll{n}')
        k.op('s_mov_b32 s64, 0x200000')
        k.label(f'L_poll{n}_loop')
        flag_issue(k, n)
        k.wait_all(lg=False)
        flag_test(k, n)
        k.op(f's_cbranch_vccz L_poll{n}_done')
        k.op('s_sleep 1')
        k.op('s_sub_u32 s64, s64, 1')
        k.op('s_cmp_lg_u32 s64, 0')
        k.op(f's_cbranch_scc1 L_poll{n}_loop')
        k.label(f'L_poll{n}_done')
        k.op(f's_setpc_b64 {RET2}')


def wg_poll(k, n):
    lab = k.newlabel('wp')
    k.raw(f's_cmp_lg_u32 {WAVE}, 0')
    k.raw(f's_cbranch_scc1 {lab}')
    k.raw(f's_call_b64 {RET2}, L_poll{n}')
    k.label(lab)
    k.op('s_barrier')


def weave(k, main, fill, start=0, stop=None):
    n = len(main)
    stop = n if stop is None else stop
    nf = len(fill)
    fi = 0
    for i, o in enumerate(main):
        k._do(o)
        if i >= start:
            tgt = min(nf, (nf * (i - start + 1)) // max(1, stop - start))
            while fi < tgt:
                for x in fill[fi]:
                    k._do(x)
                fi += 1
    while fi < nf:
        run(k, fill[fi])
        fi += 1


def dma_items(ops):
    return [[ops[0]], [ops[1]], [ops[2]], [ops[3]], [ops[4], ops[5]]]


def vd_ops(st, ldw):
    ops = [f's_mul_i32 s21, {WAVE}, {16*ldw}',
           f'v_mul_u32_u24 v{st.vd[0]}, {ldw}, v{VR4}',
           f'v_add3_u32 v{st.vd[0]}, v{st.vd[0]}, v{VSWZ}, s21']
    for q in range(1, 4):
        ops.append(f'v_add_u32 v{st.vd[q]}, {q*(4*ldw-1024)}, v{st.vd[0]}')
    ops.append(f's_mov_b32 {st.sow}, 0')
    ops.append(f's_mov_b32 {st.sox}, 0')
    return ops


class Adv(list):
    pass


def adv(reg, inc, lim):
    a = Adv([f's_add_u32 {reg}, {reg}, {inc}'])
    if lim is not None:
        a.append(f's_cmp_eq_u32 {reg}, {lim}')
        a.append(f's_cselect_b32 {reg}, 0, {reg}')
    return a


def dma_w(st, name, stage, slot, stride, lim=None):
    ops = [f's_add_u32 m0, {M0B}, {slot*16384}']
    for q in range(4):
        ops.append((f'buffer_load_dwordx4 v{st.vd[q]}, s[{st.sw}:{st.sw+3}], {st.sow} offen offset:{q*1024} lds',
                    dict(tag=(name, stage, q))))
    ops.append(adv(st.sow, stride, lim))
    return ops


def dma_kv(sp):
    ops = [f's_add_u32 m0, {M0B}, {KVB + (sp % 4)*16384}']
    for q in range(4):
        ops.append((f'buffer_load_dwordx4 v{VD2[q]}, s[{SKV}:{SKV+3}], {SOKV} offen offset:{q*1024} lds',
                    dict(tag=('kv', sp, q))))
    ops.append(adv(SOKV, 8192, None))
    return ops


def setup_m(k, st):
    for o in vd_ops(st, F * 2):
        k.op(o)
    k.op(f's_lshl_b32 s21, {M1FT}, 8')
    k.op(f's_sub_u32 s22, {S*F*2}, s21')
    srd_off(k, st.sw, PW1, 's21', 's22')
    k.op(f's_lshl_b32 s21, {M1DT}, 2')
    k.op(f's_add_u32 s21, s21, {WAVE}')
    k.op('s_lshl_b32 s22, s21, 17')
    k.op(f's_add_u32 s22, s22, {WS_H}')
    srd_off(k, st.sx, PWS, 's22', 131072)
    k.op(f's_mul_i32 {st.sow}, {M1DT}, {4*64*F*2}')
    k.op(f's_lshl_b32 {st.sox}, {M1DT}, 14')


def setup_q(k, st):
    ldw = HQ * DH * 2
    for o in vd_ops(st, ldw):
        k.op(o)
    k.op(f's_lshl_b32 s21, {HEAD}, 8')
    k.op(f's_sub_u32 s22, {D*ldw}, s21')
    srd_off(k, st.sw, PWQ, 's21', 's22')
    k.op(f's_lshl_b32 s21, {QT}, 3')
    k.op(f's_lshl_b32 s22, {WAVE}, 1')
    k.op('s_add_u32 s21, s21, s22')
    k.op('s_lshl_b32 s22, s21, 16')
    srd_off(k, st.sx, PWS, 's22', 65536)
    k.op('s_add_u32 s22, s22, 65536')
    srd_off(k, SX2, PWS, 's22', 65536)
    k.op(f's_lshl_b32 {st.sow}, {QT}, 20')
    k.op(f's_lshl_b32 {st.sox}, {QT}, 13')


def setup_mlp2(k, st):
    for o in vd_ops(st, S * 2):
        k.op(o)
    k.op(f's_lshl_b32 s21, {P3ST}, 8')
    k.op(f's_sub_u32 s22, {F*S*2}, s21')
    srd_off(k, st.sw, PW2, 's21', 's22')
    k.op(f's_lshl_b32 s21, {P3DT}, 2')
    k.op(f's_add_u32 s21, s21, {WAVE}')
    k.op(f's_mul_i32 s22, s21, {224*1024}')
    k.op(f's_add_u32 s22, s22, {WS_U}')
    srd_off(k, st.sx, PWS, 's22', 224 * 1024)
    k.op(f'v_min_u32 v{VFL}, {NEARLY-1}, v{VLANE}')
    k.op(f'v_lshlrev_b32 v{VFL}, 5, v{VFL}')
    k.op(f's_lshl_b32 s21, {P3DT}, 10')
    k.op(f's_add_u32 s21, s21, {FL_U}')
    k.op(f'v_add_u32 v{VFL}, s21, v{VFL}')


def late_mlp2(k):
    k.op(f'v_and_b32 v{VFL}, 15, v{VLANE}')
    k.op(f'v_lshlrev_b32 v{VFL}, 5, v{VFL}')
    k.op(f's_lshl_b32 s21, {P3DT}, 10')
    k.op(f's_add_u32 s21, s21, {FL_U + NEARLY*32}')
    k.op(f'v_add_u32 v{VFL}, s21, v{VFL}')


def setup_oproj(k, st):
    for o in vd_ops(st, D * 2):
        k.op(o)
    k.op(f's_lshl_b32 s21, {P3DT}, 8')
    k.op(f's_sub_u32 s22, {HQ*DH*D*2}, s21')
    srd_off(k, st.sw, PWO, 's21', 's22')
    k.op(f's_lshl_b32 s21, {P3ST}, 2')
    k.op(f's_add_u32 s21, s21, {WAVE}')
    k.op('s_lshl_b32 s22, s21, 18')
    k.op(f's_add_u32 s22, s22, {WS_O}')
    srd_off(k, st.sx, PWS, 's22', 262144)
    k.op(f'v_and_b32 v{VFL}, 15, v{VLANE}')
    k.op(f'v_lshlrev_b32 v{VFL}, 5, v{VFL}')
    k.op(f's_lshr_b32 s21, {P3ST}, 1')
    k.op('s_lshl_b32 s21, s21, 10')
    k.op(f's_add_u32 s21, s21, {FL_O}')
    k.op(f'v_add_u32 v{VFL}, s21, v{VFL}')


def late_oproj(k):
    k.op(f'v_add_u32 v{VFL}, {16*32}, v{VFL}')


def flags_ln_all(k):
    k.op(f'v_lshlrev_b32 v{VFL}, 5, v{VLANE}')


def bias_load_ops():
    r_ = Rec()
    srd_off(r_, 60, PB1, 0, F * 2)
    r_.op(f'v_lshrrev_b32 v1, 5, v{VLANE}')
    r_.op('v_lshlrev_b32 v1, 3, v1')
    r_.op(f's_lshl_b32 s23, {M1FT}, 8')
    for j in range(16):
        r = 96 + 2 * j
        r_.op(f'buffer_load_dwordx2 v[{r}:{r+1}], v1, s[60:63], s23 offen offset:{j*16}')
    return r_.ops


def bias_unpack_ops():
    ops = []
    for j in range(32):
        src = 96 + j
        lo, hi = 64 + 2 * j, 65 + 2 * j
        if hi == src:
            ops.append(f'v_lshlrev_b32 v{lo}, 16, v{src}')
            ops.append(f'v_and_b32 v{hi}, 0xffff0000, v{src}')
        else:
            ops.append(f'v_and_b32 v{hi}, 0xffff0000, v{src}')
            ops.append(f'v_lshlrev_b32 v{lo}, 16, v{src}')
    return ops


G_WF, G_XF = 192, 128
G_R, G_P, G_DX, G_L = 8, 6, 16, 6


class GP:
    def __init__(self, name, st, ldw, nst, w_is_a, acc, rot=False):
        self.name, self.st, self.ldw, self.nst, self.w_is_a, self.acc = name, st, ldw, nst, w_is_a, acc
        self.rot = rot

    def dma(self, stage):
        return dma_w(self.st, self.name, stage, stage % G_R, 64 * self.ldw,
                     64 * self.ldw * self.nst if self.rot else None)

    def xload(self, t):
        r = G_XF + 4 * (t % G_DX)
        st = self.st
        ops = [f'buffer_load_dwordx4 a[{r}:{r+3}], v{VL16}, s[{st.sx}:{st.sx+3}], {st.sox} offen offset:{(t%4)*1024} sc1']
        if t % 4 == 3:
            ops.append(adv(st.sox, 4096, 4096 * self.nst if self.rot else None))
        return ops

    def wread(self, f):
        t, mb = f // 4, f % 4
        stg, kk = t // 4, t % 4
        slot = stg % G_R
        va = (VGA if slot < 4 else VGA2)[mb]
        off = (slot % 4) * 16384 + kk * 4096
        r = G_WF + 4 * (f % 8)
        return [f'ds_read_b64_tr_b16 a[{r}:{r+1}], v{va} offset:{off}',
                (f'ds_read_b64_tr_b16 a[{r+2}:{r+3}], v{va} offset:{off+2048}', dict(tag=(self.name, 'wf', f)))]

    def mfma(self, f, czero=False):
        t, mb = f // 4, f % 4
        wr = G_WF + 4 * (f % 8)
        xr = G_XF + 4 * (t % G_DX)
        acc = self.acc + 16 * mb
        wa, xa = f'a[{wr}:{wr+3}]', f'a[{xr}:{xr+3}]'
        a, b = (wa, xa) if self.w_is_a else (xa, wa)
        c = '0' if czero else f'v[{acc}:{acc+15}]'
        return f'v_mfma_f32_32x32x16_bf16 v[{acc}:{acc+15}], {a}, {b}, {c}'


def g_body(k, g, it, shadow=None, sh_stop=100, czero=False, early_dma=None, tail=None, hooks=None, pub=None):
    nf = g.nst * 16
    pending = list(early_dma or [])
    shadow = shadow or []
    si = 0
    for fb in range(128):
        f = it * 128 + fb
        nd = [(g.name, 'wf', f + 1)] if f % 2 == 0 else None
        k.op(g.mfma(f, czero and f < 4), need=nd)
        if hooks and fb in hooks:
            hooks[fb]()
        fn_ = f + G_L
        if fn_ % 16 == 0:
            stg = fn_ // 16
            if stg < g.nst or tail is None:
                k.need([(g.name, stg, q) for q in range(4)])
            else:
                k.need(tail['need'](stg - g.nst))
            if pub and fb == 122:
                k.need(pub[0])
            k.op('s_barrier')
            if pub and fb == 122:
                flag_store(k, pub[1])
            ns = stg + G_P
            if ns < g.nst or tail is None:
                pending += g.dma(ns)
            else:
                pending += tail['dma'](ns - g.nst) or []
        if pending and isinstance(pending[0], str) and ' m0,' in pending[0]:
            k._do(pending.pop(0))
        if fn_ < nf or tail is None:
            rd = g.wread(fn_)
        else:
            rd = tail['wread'](fn_ - nf) or ['s_nop 0']
        for o in rd:
            k._do(o)
        if f % 4 == 3:
            tn = f // 4 + G_DX
            if tn < g.nst * 4 or tail is None:
                xo = g.xload(tn)
            else:
                xo = tail['x'](tn - g.nst * 4) or []
            for o in xo:
                k._do(o)
        elif pending and (f % 4 == 1 or len(pending) > 6 or fb >= 122):
            k._do(pending.pop(0))
            if pending and isinstance(pending[0], Adv):
                k._do(pending.pop(0))
        tgt = min(len(shadow), (len(shadow) * (fb + 1)) // sh_stop)
        while si < tgt:
            k._do(shadow[si])
            si += 1
    assert not pending, pending
    assert si == len(shadow)


def g_loop(k, g, it0, n, chk=None):
    for it in k.loop(n, CNT, g.name):
        hooks = {}
        if chk is not None:
            l2 = k.newlabel('c2')
            k.raw(f's_cmp_eq_u32 {CNT}, {chk-1}')
            k.raw(f's_cbranch_scc0 {l2}')
            k.raw(f'v_cmp_ne_u32 vcc, {NONCE}, v{VFV}')
            k.raw(f's_cbranch_vccz {l2}')
            k.raw(f's_call_b64 {RET2}, L_poll1')
            k.label(l2)

            def issue():
                l1 = k.newlabel('c1')
                k.raw(f's_cmp_eq_u32 {CNT}, {chk}')
                k.raw(f's_cbranch_scc0 {l1}')
                k.raw(f'buffer_load_dword v{VFV}, v{VFL}, s[{SFL}:{SFL+3}], 0 offen sc1')
                k.label(l1)
            hooks[48] = issue
        g_body(k, g, it0 + it, hooks=hooks)


def post_m_ops(acc, temps):
    r_ = Rec()
    r_.op(f's_lshl_b32 s21, {M1DT}, 2')
    r_.op(f's_add_u32 s21, s21, {WAVE}')
    r_.op(f's_mul_i32 s22, s21, {224*1024}')
    r_.op(f's_add_u32 s22, s22, {WS_U}')
    r_.op(f's_mul_i32 s21, {HASM}, {224*1024}')
    srd_off(r_, SST, PWS, 's22', 's21')
    r_.op(f'v_mov_b32 v35, {hx(GELU_C0)}')
    r_.op(f's_mov_b32 s23, {hx(GELU_C1)}')
    r_.op(f's_lshl_b32 s65, {M1FT}, 13')
    tags = []
    for h8 in range(8):
        b0 = acc + 8 * h8
        for g4 in range(2):
            xs = [b0 + 4 * g4 + i for i in range(4)]
            for x, t in zip(xs, temps):
                r_.op(f'v_mul_f32 v{t}, v{x}, v{x}')
            for x, t in zip(xs, temps):
                r_.op(f'v_fma_f32 v{t}, v{t}, s23, v35')
            for x, t in zip(xs, temps):
                r_.op(f'v_mul_f32 v{t}, v{t}, v{x}')
            for x, t in zip(xs, temps):
                r_.op(f'v_exp_f32 v{t}, v{t}')
            for x, t in zip(xs, temps):
                r_.op(f'v_add_f32 v{t}, 1.0, v{t}')
            for x, t in zip(xs, temps):
                r_.op(f'v_rcp_f32 v{t}, v{t}')
            for x, t in zip(xs, temps):
                r_.op(f'v_mul_f32 v{x}, v{x}, v{t}')
            r_.op(f'v_cvt_pk_bf16_f32 v{b0+2*g4}, v{xs[0]}, v{xs[1]}')
            r_.op(f'v_cvt_pk_bf16_f32 v{b0+2*g4+1}, v{xs[2]}, v{xs[3]}')
        va = VL16 if h8 < 4 else VL16B
        r_.op(f'buffer_store_dwordx4 v[{b0}:{b0+3}], v{va}, s[{SST}:{SST+3}], s65 offen offset:{(h8%4)*1024} sc1',
              tag=('ust', h8))
        tags.append(('ust', h8))
    return r_.ops, tags


def post_q_ops():
    r_ = Rec()
    for qb in range(2):
        r_.op(f'v_mov_b32 v{36+qb}, v{LS[qb]}')
    r_.op(f's_lshl_b32 s21, {QT}, 3')
    r_.op(f's_lshl_b32 s22, {WAVE}, 1')
    for qb in range(2):
        r_.op(f'v_permlane32_swap_b32 v{LS[qb]}, v{36+qb}')
    r_.op('s_add_u32 s21, s21, s22')
    for qb in range(2):
        r_.op(f'v_add_f32 v{LS[qb]}, v{LS[qb]}, v{36+qb}')
    for qb in range(2):
        r_.op(f'v_rcp_f32 v{LS[qb]}, v{LS[qb]}')
    r_.op('s_lshl_b32 s22, s21, 18')
    r_.op(f's_add_u32 s22, s22, {WS_O}')
    srd_off(r_, SST, PWS, 's22', 2 * 262144)
    r_.op(f's_lshl_b32 s65, {HEAD}, 13')
    r_.op('s_add_u32 s23, s65, 262144')
    r_.op(f's_lshl_b32 s3, {QT}, 5')
    r_.op(f's_add_u32 s3, s3, {HEAD}')
    r_.op('s_lshl_b32 s3, s3, 5')
    r_.op(f's_add_u32 s101, s3, {FL_O}')
    tags = []
    n = 0
    for mb in range(4):
        for qb in range(2):
            o = (mb * 2 + qb) * 16
            for half in range(2):
                T = 128 + (n % 8) * 8
                P = 192 + (n % 8) * 4
                for i in range(8):
                    r_.op(f'v_accvgpr_read_b32 v{T+i}, a{o+8*half+i}')
                for i in range(8):
                    r_.op(f'v_mul_f32 v{T+i}, v{T+i}, v{LS[qb]}')
                for j in range(4):
                    r_.op(f'v_cvt_pk_bf16_f32 v{P+j}, v{T+2*j}, v{T+2*j+1}')
                ks = 2 * mb + half
                so = 's65' if qb == 0 else 's23'
                va = VL16 if ks < 4 else VL16B
                r_.op(f'buffer_store_dwordx4 v[{P}:{P+3}], v{va}, s[{SST}:{SST+3}], {so} offen offset:{(ks%4)*1024} sc1',
                      tag=('ost', n))
                tags.append(('ost', n))
                n += 1
    return r_.ops, tags


Q_ACC, Q_WF, Q_XF, Q_DX, Q_L = 128, 192, 0, 8, 4
QF = 128
SB = [128, 160]
CI = 192
PB = 224
FR = 192
LA = 4
LDQ = HQ * DH * 2


class QP:
    def __init__(self, st):
        self.st = st

    def dma(self, stage):
        return dma_w(self.st, 'q', stage, stage % 4, 64 * LDQ, D * LDQ)

    def xload1(self, t, qb):
        r = Q_XF + 8 * (t % Q_DX) + 4 * qb
        sx = self.st.sx if qb == 0 else SX2
        ops = [f'buffer_load_dwordx4 a[{r}:{r+3}], v{VL16}, s[{sx}:{sx+3}], {self.st.sox} offen offset:{(t%4)*1024} sc1']
        if t % 4 == 3 and qb == 1:
            ops.append(adv(self.st.sox, 4096, 65536))
        return ops

    def wread(self, f):
        t, mb = f // 4, f % 4
        stg, kk = t // 4, t % 4
        off = (stg % 4) * 16384 + kk * 4096
        r = Q_WF + 4 * (f % 8)
        return [f'ds_read_b64_tr_b16 a[{r}:{r+1}], v{VAQ[mb]} offset:{off}',
                f'ds_read_b64_tr_b16 a[{r+2}:{r+3}], v{VAQ[mb]} offset:{off+1024}']

    def mfma(self, f, qb, czero=False):
        t, mb = f // 4, f % 4
        wr = Q_WF + 4 * (f % 8)
        xr = Q_XF + 8 * (t % Q_DX) + 4 * qb
        acc = Q_ACC + (mb * 2 + qb) * 16
        c = '0' if czero else f'v[{acc}:{acc+15}]'
        return f'v_mfma_f32_32x32x16_bf16 v[{acc}:{acc+15}], a[{wr}:{wr+3}], a[{xr}:{xr+3}], {c}'


def q_body(k, q, it, shadow=None, sh_stop=52, czero=False, pub=None):
    pending = []
    xp = []
    shadow = shadow or []
    si = 0

    def shade(n):
        nonlocal si
        tgt = min(len(shadow), (len(shadow) * n) // (2 * sh_stop))
        while si < tgt:
            k._do(shadow[si])
            si += 1
    for fb in range(64):
        f = it * 64 + fb
        k.op(q.mfma(f, 0, czero and f < 4))
        fn = f + Q_L
        if fn % 16 == 0:
            stg = fn // 16
            k.need([('q', stg, j) for j in range(4)])
            if pub and fb == 60:
                k.need(pub[0])
            k.op('s_barrier')
            if pub and fb == 60:
                flag_store(k, pub[1])
            pending += q.dma(stg + 2)
            k._do(pending.pop(0))
        rd = q.wread(fn)
        k._do(rd[0])
        if xp:
            run(k, xp)
            xp = []
        shade(2 * fb + 1)
        k.op(q.mfma(f, 1, czero and f < 4))
        k._do(rd[1])
        if f % 4 == 3:
            run(k, q.xload1(f // 4 + Q_DX, 0))
            xp = q.xload1(f // 4 + Q_DX, 1)
            if fb == 63:
                run(k, xp)
                xp = []
        elif pending:
            k._do(pending.pop(0))
            if pending and isinstance(pending[0], Adv):
                k._do(pending.pop(0))
            if fb >= 60 and pending:
                k._do(pending.pop(0))
                if pending and isinstance(pending[0], Adv):
                    k._do(pending.pop(0))
        shade(2 * fb + 2)
    assert not pending and not xp and si == len(shadow)


def maxops(b1):
    ops = []
    for step in range(8):
        for qb in range(2):
            s = SB[b1 % 2] + 16 * qb
            if step == 0:
                ops.append(f'v_max3_f32 v{TM[qb]}, v{s}, v{s+1}, v{s+2}')
            elif step < 7:
                ops.append(f'v_max3_f32 v{TM[qb]}, v{TM[qb]}, v{s+1+2*step}, v{s+2+2*step}')
            else:
                ops.append(f'v_max_f32 v{TM[qb]}, v{TM[qb]}, v{s+15}')
    return ops


def attention(k, extras):
    def qcvt(ks):
        ops = []
        mb, hh = ks // 2, ks % 2
        for qb in range(2):
            acc = Q_ACC + (mb * 2 + qb) * 16 + 8 * hh
            for j in range(4):
                ops.append(f'v_cvt_pk_bf16_f32 v{36+j}, v{acc+2*j}, v{acc+2*j+1}')
            for j in range(4):
                ops.append(f'v_accvgpr_write_b32 a{QF + (qb*8+ks)*4 + j}, v{36+j}')
        return ops

    def kvread(b, j):
        sp = b + 1
        r = FR + 4 * (j % 16)
        so = (sp % 4) * 16384
        if j < 8:
            return [f'ds_read_b128 a[{r}:{r+3}], v{VK[j]} offset:{so}']
        kk, mb = (j - 8) // 4, (j - 8) % 4
        return [f'ds_read_b64_tr_b16 a[{r}:{r+1}], v{VV[mb]} offset:{so + kk*4096}',
                f'ds_read_b64_tr_b16 a[{r+2}:{r+3}], v{VV[mb]} offset:{so + kk*4096 + 2048}']

    def qk(b1, ks, qb, first_zero=False):
        s = SB[b1 % 2] + 16 * qb
        r = FR + 4 * ks
        q = QF + (qb * 8 + ks) * 4
        if ks == 0:
            c = '0' if first_zero else f'v[{CI+16*qb}:{CI+16*qb+15}]'
        else:
            c = f'v[{s}:{s+15}]'
        return f'v_mfma_f32_32x32x16_bf16 v[{s}:{s+15}], a[{r}:{r+3}], a[{q}:{q+3}], {c}'

    def pv(kk, mb, qb, zero=False):
        o = (mb * 2 + qb) * 16
        r = FR + 4 * (8 + kk * 4 + mb)
        p = PB + (qb * 2 + kk) * 4
        c = '0' if zero else f'a[{o}:{o+15}]'
        return f'v_mfma_f32_32x32x16_bf16 a[{o}:{o+15}], a[{r}:{r+3}], v[{p}:{p+3}], {c}'

    k.need([('kv', sp, q) for sp in range(2) for q in range(4)])
    for j in range(8):
        run(k, kvread(-1, j))
    run(k, dma_kv(2))
    run(k, dma_kv(3))
    for ks in range(4):
        for o in qcvt(ks):
            k.op(o)
    k.op('s_nop 0')
    for ks in range(8):
        cv = qcvt(ks + 4) if ks + 4 < 8 else []
        for qb in range(2):
            k.op(qk(0, ks, qb, True))
            for o in cv[8 * qb: 8 * qb + 8]:
                k.op(o)
        if ks >= 4:
            run(k, kvread(0, ks - 4))
    k.op(f'v_mov_b32 v{LS[0]}, 0')
    k.op(f'v_mov_b32 v{LS[1]}, 0')
    k.op('s_nop 7')
    k.op('s_nop 1')
    for o in maxops(0):
        k.op(o)
    for qb in range(2):
        k.op(f'v_mov_b32 v{36+qb}, v{TM[qb]}')
    k.op('s_nop 1')
    for qb in range(2):
        k.op(f'v_permlane32_swap_b32 v{TM[qb]}, v{36+qb}')
    k.op('s_nop 0')
    for qb in range(2):
        k.op(f'v_max_f32 v{TM[qb]}, v{TM[qb]}, v{36+qb}')
    for qb in range(2):
        for i in range(16):
            k.op(f'v_sub_f32 v{CI+16*qb+i}, 0, v{TM[qb]}')
    for qb in range(2):
        for i in range(16):
            k.op(f'v_sub_f32 v{SB[0]+16*qb+i}, v{SB[0]+16*qb+i}, v{TM[qb]}')
    stamp(k, 6)

    for b in range(16):
        last = b == 15
        sb = SB[b % 2]
        ex = []
        for kk in range(2):
            for qb in range(2):
                for j in range(4):
                    a0 = sb + 16 * qb + 8 * kk + 2 * j
                    ex.append(f'v_exp_f32 v{a0}, v{a0}')
                    ex.append(f'v_exp_f32 v{a0+1}, v{a0+1}')
                    ex.append(('cvt', f'v_cvt_pk_bf16_f32 v{PB + (qb*2+kk)*4 + j}, v{a0}, v{a0+1}', a0, qb))
        seq = []
        held = None
        for e in ex:
            if isinstance(e, tuple):
                if held is not None:
                    seq.append(held)
                held = e
            else:
                seq.append(e)
                if held is not None:
                    seq.append(held)
                    held = None
        if held is not None:
            seq.append('s_nop 0')
            seq.append(held)
        slots = [[] for _ in range(32)]
        adds = []
        nseq = len(seq)
        nsl = 23
        for i, e in enumerate(seq):
            sl = i * nsl // nseq
            if isinstance(e, tuple):
                slots[sl].append(e[1])
                adds.append((sl + 1, f'v_add_f32 v{LS[e[3]]}, v{LS[e[3]]}, v{e[2]}'))
                adds.append((sl + 1, f'v_add_f32 v{LS[e[3]]}, v{LS[e[3]]}, v{e[2]+1}'))
            else:
                slots[sl].append(e)
        ai = 0
        for sl in range(32):
            n = 1 if sl < 23 else 2
            if last:
                n = 0 if sl < 16 else 2
            while n > 0 and ai < len(adds) and adds[ai][0] <= sl:
                slots[sl].append(adds[ai][1])
                ai += 1
                n -= 1
        while ai < len(adds):
            slots[31].append(adds[ai][1])
            ai += 1
        if not last:
            mo = maxops(b + 1)
            for i, o in enumerate(mo):
                slots[23 + i // 2].append(o)
            slots[31].append(f'v_max_f32 v{TM[2]}, v{TM[0]}, v{TM[1]}')
            slots[31].append(f'v_cmp_lt_f32 vcc, {STHR}, v{TM[2]}')
        xs = [[] for _ in range(32)]
        for (lo, hi, items) in extras.get(b, []):
            for i, it in enumerate(items):
                xs[lo + (i * (hi - lo)) // len(items)].append(it)
        pending = []
        for sl in range(32):
            j = sl // 2
            qb = sl % 2
            if sl < 16:
                if not last:
                    k.op(qk(b + 1, j, qb))
            else:
                kk, mb = (j - 8) // 4, (j - 8) % 4
                k.op(pv(kk, mb, qb, b == 0 and kk == 0))
            jn = j + LA
            bn = b
            if jn >= 16:
                jn -= 16
                bn = b + 1
            skip = (bn == 15 and jn < 8) or bn > 15
            if qb == 0 and jn == 0 and bn <= 15:
                k.need([('kv', bn + 1, q) for q in range(4)])
                k.op('s_barrier')
                if bn + 3 <= 16:
                    pending += dma_kv(bn + 3)
            if not skip:
                rd = kvread(bn, jn)
                if len(rd) == 2:
                    k._do(rd[qb])
                elif qb == 0:
                    k._do(rd[0])
            for it in xs[sl]:
                for o in it:
                    k._do(o)
            for o in slots[sl]:
                k.op(o)
            if pending:
                k._do(pending.pop(0))
                if pending and isinstance(pending[0], Adv):
                    k._do(pending.pop(0))
        assert not pending
        if not last:
            lab = k.newlabel('norescale')
            k.op(f's_cbranch_vccz {lab}')
            k.op(f's_call_b64 {RET2}, L_q_rescale{(b+1)%2}')
            k.label(lab)


def gen_q_rescale(k):
    for par in range(2):
        sb = SB[par]
        k.label(f'L_q_rescale{par}')
        k.op('s_nop 15')
        for qb in range(2):
            k.op(f'v_mov_b32 v{36+qb}, v{TM[qb]}')
        k.op('s_nop 1')
        for qb in range(2):
            k.op(f'v_permlane32_swap_b32 v{TM[qb]}, v{36+qb}')
        k.op('s_nop 0')
        for qb in range(2):
            k.op(f'v_max3_f32 v{TM[qb]}, v{TM[qb]}, v{36+qb}, 0')
        for qb in range(2):
            k.op(f'v_sub_f32 v{36+qb}, 0, v{TM[qb]}')
        for qb in range(2):
            k.op(f'v_exp_f32 v{36+qb}, v{36+qb}')
        for qb in range(2):
            for i in range(16):
                k.op(f'v_sub_f32 v{sb+16*qb+i}, v{sb+16*qb+i}, v{TM[qb]}')
        k.op('s_branch L_q_rescale_c')
    k.label('L_q_rescale_c')
    for qb in range(2):
        for i in range(16):
            k.op(f'v_sub_f32 v{CI+16*qb+i}, v{CI+16*qb+i}, v{TM[qb]}')
        k.op(f'v_mul_f32 v{LS[qb]}, v{LS[qb]}, v{36+qb}')
    for mb in range(4):
        for qb in range(2):
            o = (mb * 2 + qb) * 16
            for i in range(16):
                k.op(f'v_accvgpr_read_b32 v{240+i}, a{o+i}')
            for i in range(16):
                k.op(f'v_mul_f32 v{240+i}, v{240+i}, v{36+qb}')
            for i in range(16):
                k.op(f'v_accvgpr_write_b32 a{o+i}, v{240+i}')
    k.op('s_nop 3')
    k.op(f's_setpc_b64 {RET2}')


def gather_item(k, wave, ptr, nbytes, add):
    def fn():
        lab = k.newlabel('ga')
        k.raw(f's_cmp_lg_u32 {WAVE}, {wave}')
        k.raw(f's_cbranch_scc1 {lab}')
        k.raw(f's_mov_b32 s60, s{ptr}')
        k.raw(f's_and_b32 s61, s{ptr+1}, 0xffff')
        k.raw(f's_mov_b32 s62, {nbytes}')
        k.raw('s_mov_b32 s63, 0x00020000')
        k.raw(f's_add_u32 s64, {GID}, {add}')
        k.raw(f'buffer_load_dword v{VDUM}, v{VL128}, s[60:63], s64 offen')
        k.label(lab)
    return [fn]


def chunks(ops, n):
    return [ops[i:i + n] for i in range(0, len(ops), n)]


def att_extras(k, g, setup_fn, nflag, more=None):
    ex = {}
    r_ = Rec()
    setup_fn(r_)
    ex[9] = [(2, 22, chunks(r_.ops, 2))]
    ex[10] = [(2, 3, [[lambda: flag_issue(k, nflag)]])]
    ex.setdefault(11, []).append((0, 22, dma_items(g.dma(0)) + dma_items(g.dma(1))))
    ex.setdefault(12, []).append((0, 22, dma_items(g.dma(2)) + dma_items(g.dma(3))))
    ex.setdefault(13, []).append((4, 5, [[lambda: flag_check(k, nflag)]]))
    ex.setdefault(14, []).append((16, 32, [g.xload(t) for t in range(6)]))
    ex.setdefault(15, []).append((0, 20, [g.xload(t) for t in range(6, 16)]))
    for b, lst in (more or {}).items():
        ex.setdefault(b, []).extend(lst)
    return ex


def q_to_g(k, g, czero, late_fn=None):
    k.need([(g.name, 0, q) for q in range(4)])
    k.op('s_barrier')
    stamp(k, 7)
    for f in range(G_L):
        run(k, g.wread(f))
    ops, tags = post_q_ops()
    if late_fn:
        r_ = Rec()
        late_fn(r_)
        ops = ops + r_.ops
    for o in ops[:40]:
        k._do(o)
    early = g.dma(4) + g.dma(5) + g.dma(6)
    g_body(k, g, 0, shadow=ops[40:], sh_stop=96, czero=czero, early_dma=early, pub=(tags, 's101'))


def gen_class0(k):
    k.label('L_c0')
    q = QP(SETA)
    m = GP('m', SETB, F * 2, S // 64, True, 64, rot=True)
    p = GP('p', SETA, S * 2, F // 64, False, 128)
    for st in range(3):
        for j in range(4):
            k.pretag(('q', st, j))
    run(k, dma_kv(0))
    run(k, dma_kv(1))
    k.op(f'v_and_b32 v{VFL}, 31, v{VLANE}')
    k.op(f'v_lshlrev_b32 v{VFL}, 5, v{VFL}')
    k.op(f's_lshl_b32 s21, {QT}, 10')
    k.op(f's_add_u32 s21, s21, {FL_XN}')
    k.op(f'v_add_u32 v{VFL}, s21, v{VFL}')
    k.need([('q', 0, j) for j in range(4)])
    wg_poll(k, 1)
    for t in range(Q_DX):
        for qb in range(2):
            run(k, q.xload1(t, qb))
    for f in range(Q_L):
        run(k, q.wread(f))
    for i in range(128):
        k.op(f'v_mov_b32 v{Q_ACC+i}, 0')
    stamp(k, 4)
    for it in k.loop(4, CNT, 'qproj'):
        q_body(k, q, it)
    stamp(k, 5)

    def setup(r_):
        setup_m(r_, SETB)
        flags_ln_all(r_)
    un = bias_unpack_ops()
    more = {2: [(4, 22, chunks(bias_load_ops(), 2))],
            5: [(4, 22, chunks(un[:22], 1))], 6: [(4, 22, chunks(un[22:44], 1))], 8: [(4, 22, chunks(un[44:], 1))]}
    for b in range(10):
        it = gather_item(k, b % 4, PW2, S * F * 2, (8 + b) * MB) if b < 6 else gather_item(k, b % 4, PWO, 8 * MB, (b - 2) * MB)
        more.setdefault(b, []).append((1, 2, [it]))
    attention(k, att_extras(k, m, setup, 4, more))
    q_to_g(k, m, False)
    stamp(k, 8)
    g_loop(k, m, 1, 2)
    setup_mlp2(k, SETA)
    flag_issue(k, 1)
    tail = dict(dma=p.dma, x=p.xload, wread=p.wread, need=lambda s: [('p', s, j) for j in range(4)])
    g_body(k, m, 3, tail=tail, hooks={60: lambda: flag_check(k, 1)})
    stamp(k, 9)
    ops, tags = post_m_ops(64, [192, 193, 194, 195])
    r_ = Rec()
    late_mlp2(r_)
    srd_off(r_, 60, PB2, 0, S * 2)
    r_.op(f'v_and_b32 v1, 31, v{VLANE}')
    r_.op('v_lshlrev_b32 v1, 1, v1')
    r_.op(f's_lshl_b32 s21, {P3ST}, 8')
    for nb in range(4):
        r_.op(f'buffer_load_ushort v{224+nb}, v1, s[60:63], s21 offen offset:{nb*64}')
    g_body(k, p, 0, shadow=r_.ops + ops, sh_stop=104, czero=True, pub=(tags, UFLAG))
    stamp(k, 12)
    g_loop(k, p, 1, 6, chk=6)
    stamp(k, 13)
    k.op(f's_lshl_b32 s22, {TILE}, 15')
    k.op(f's_lshl_b32 s21, {WAVE}, 13')
    k.op('s_add_u32 s22, s22, s21')
    k.op(f's_add_u32 s22, s22, {WS_G}')
    srd_off(k, SST, PWS, 's22', 8192)
    k.op(f's_mov_b32 s22, {hx(-math.log2(math.e))}')
    for nb in range(4):
        k.op(f'v_lshlrev_b32 v{224+nb}, 16, v{224+nb}')
    T = list(range(192, 200))
    for h8 in range(8):
        nb = h8 // 2
        xs = [128 + 8 * h8 + i for i in range(8)]
        for x in xs:
            k.op(f'v_add_f32 v{x}, v{x}, v{224+nb}')
        for x, t in zip(xs, T):
            k.op(f'v_mul_f32 v{t}, s22, v{x}')
        for x, t in zip(xs, T):
            k.op(f'v_exp_f32 v{t}, v{t}')
        for x, t in zip(xs, T):
            k.op(f'v_add_f32 v{t}, 1.0, v{t}')
        for x, t in zip(xs, T):
            k.op(f'v_rcp_f32 v{t}, v{t}')
        for x, t in zip(xs, T):
            k.op(f'v_mul_f32 v{x}, v{x}, v{t}')
        for j in range(4):
            k.op(f'v_cvt_pk_bf16_f32 v{xs[j]}, v{xs[2*j]}, v{xs[2*j+1]}')
        va = VL16 if h8 < 4 else VL16B
        k.op(f'buffer_store_dwordx4 v[{xs[0]}:{xs[3]}], v{va}, s[{SST}:{SST+3}], 0 offen offset:{(h8%4)*1024} sc1')
    k.op(f's_lshl_b32 s21, {TILE}, 5')
    k.op(f's_add_u32 s21, s21, {FL_G}')
    k.wait_all()
    k.op('s_barrier')
    flag_store(k, 's21')
    stamp(k, 15)
    stamp_dump(k)
    k.op('s_endpgm')


def gen_class1(k):
    k.label('L_c1')
    m = GP('m', SETA, F * 2, S // 64, True, 64, rot=True)
    q = QP(SETB)
    p = GP('p', SETA, D * 2, HQ * DH // 64, True, 64)
    for st in range(3):
        for j in range(4):
            k.pretag(('m', st, j))
    k.op(f's_cmp_eq_u32 {HASM}, 0')
    k.op('s_cbranch_scc1 L_c1_pf')
    run(k, bias_load_ops())
    for st in range(3, G_P + 1):
        run(k, m.dma(st))
    flags_ln_all(k)
    for o in bias_unpack_ops():
        k.op(o)
    k.need([('m', 0, j) for j in range(4)])
    wg_poll(k, 4)
    for t in range(G_DX):
        run(k, m.xload(t))
    for f in range(G_L):
        run(k, m.wread(f))
    stamp(k, 8)
    g_loop(k, m, 0, 3)

    def tdma(s):
        if s < 3:
            return q.dma(s)
        if s in (4, 5):
            return dma_kv(s - 4)
        return None
    tail = dict(dma=tdma, x=lambda t: q.xload1(t // 2, t % 2), wread=lambda f: None,
                need=lambda s: [('q', s, j) for j in range(4)])
    g_body(k, m, 3, tail=tail)
    stamp(k, 9)
    k.label('L_c1_q')
    for f in range(Q_L):
        run(k, q.wread(f))
    stamp(k, 4)
    ops, tags = post_m_ops(64, [36, 37, 38, 39])
    for o in ops[:14]:
        k._do(o)
    q_body(k, q, 0, shadow=ops[14:], czero=True, pub=(tags, UFLAG))
    for it in k.loop(3, CNT, 'qproj'):
        q_body(k, q, it + 1)
    stamp(k, 5)
    attention(k, att_extras(k, p, lambda r_: setup_oproj(r_, SETA), 1))
    q_to_g(k, p, True, late_oproj)
    stamp(k, 12)
    g_loop(k, p, 1, 6, chk=5)
    r_ = Rec()
    srd_off(r_, 60, PX, 0, S * D * 2)
    r_.op(f'v_and_b32 v35, 31, v{VLANE}')
    r_.op('v_lshlrev_b32 v35, 11, v35')
    r_.op(f'v_lshrrev_b32 v1, 5, v{VLANE}')
    r_.op('v_lshl_add_u32 v35, v1, 3, v35')
    r_.op(f's_lshl_b32 s21, {P3ST}, 2')
    r_.op(f's_add_u32 s21, s21, {WAVE}')
    r_.op('s_lshl_b32 s65, s21, 16')
    r_.op(f's_lshl_b32 s21, {P3DT}, 8')
    r_.op('s_add_u32 s65, s65, s21')
    r_.op(f's_lshl_b32 s21, {TILE}, 5')
    r_.op(f's_add_u32 s21, s21, {FL_G}')
    r_.op(f'v_mov_b32 v{VFL}, s21')
    r_.op(f's_lshl_b32 s22, {TILE}, 15')
    r_.op(f's_lshl_b32 s21, {WAVE}, 11')
    r_.op('s_add_u32 s22, s22, s21')
    r_.op(f's_add_u32 s22, s22, {WS_G}')
    srd_off(r_, SKV, PWS, 's22', 32768)
    srd_off(r_, SST, POUT, 0, S * D * 2)
    r_.op('s_mov_b32 s21, 8192')
    r_.op('s_mov_b32 s22, 16384')
    r_.op('s_mov_b32 s23, 24576')
    xl = [[f'buffer_load_dwordx2 v[{224+2*j}:{225+2*j}], v35, s[60:63], s65 offen offset:{j*16}'] for j in range(16)]
    gso = ['0', 's21', 's22', 's23']
    gl = [[f'buffer_load_dwordx4 v[{160+4*j}:{163+4*j}], v{VL16}, s[{SKV}:{SKV+3}], {gso[j//2]} offen offset:{(j%2)*1024} sc1']
          for j in range(8)]

    def tx(t):
        if t < 8:
            return xl[2 * t] + xl[2 * t + 1]
        return gl[t - 8]
    tail = dict(dma=lambda s: None, x=tx, wread=lambda f: None, need=lambda s: [])
    g_body(k, p, 7, shadow=r_.ops, sh_stop=40, tail=tail,
           hooks={64: lambda: flag_issue(k, 1), 97: lambda: flag_check(k, 1)})
    stamp(k, 13)
    k.op('s_mov_b32 s3, 0xffff0000')
    A = 64
    T = list(range(192, 208))
    for h8 in range(8):
        xs = [A + 8 * h8 + i for i in range(8)]
        gr = [160 + 4 * h8 + j for j in range(4)]
        xr = [224 + 4 * h8 + j for j in range(4)]
        for j in range(4):
            k.op(f'v_lshlrev_b32 v{T[2*j]}, 16, v{gr[j]}')
            k.op(f'v_and_b32 v{T[2*j+1]}, s3, v{gr[j]}')
            k.op(f'v_lshlrev_b32 v{T[8+2*j]}, 16, v{xr[j]}')
            k.op(f'v_and_b32 v{T[9+2*j]}, s3, v{xr[j]}')
        for j in range(8):
            k.op(f'v_fmac_f32 v{T[8+j]}, v{xs[j]}, v{T[j]}')
        for j in range(4):
            k.op(f'v_cvt_pk_bf16_f32 v{xr[j]}, v{T[8+2*j]}, v{T[9+2*j]}')
        for j2 in range(2):
            k.op(f'buffer_store_dwordx2 v[{xr[2*j2]}:{xr[2*j2+1]}], v35, s[{SST}:{SST+3}], s65 offen offset:{(2*h8+j2)*16}')
    if STAMPS:
        k.wait_all()
    stamp(k, 15)
    stamp_dump(k)
    k.op('s_endpgm')


def gen_class1_pf(k):
    q = QP(SETB)
    k.label('L_c1_pf')
    k.op('s_bfe_u32 s21, s2, 0x20001')
    k.op('s_lshl_b32 s21, s21, 3')
    k.op('s_bfe_u32 s22, s2, 0x30003')
    k.op('s_add_u32 s21, s21, s22')
    k.op('s_lshl_b32 s21, s21, 2')
    k.op(f's_add_u32 s21, s21, {WAVE}')
    srd_off(k, 60, PW2, 0, S * F * 2)
    srd_off(k, 8, PWO, 0, 8 * MB)
    k.op('s_lshl_b32 s22, s21, 13')
    k.op('s_bitcmp1_b32 s21, 6')
    k.op(f's_cselect_b32 s64, s{PV}, s{PK}')
    k.op(f's_cselect_b32 s65, s{PV+1}, s{PK+1}')
    srd_off(k, 12, 64, 0, HKV * SK * DH * 2)
    k.op('s_bfe_u32 s3, s21, 0x20004')
    k.op('s_lshl_b32 s3, s3, 19')
    k.op('s_and_b32 s64, s21, 15')
    k.op('s_lshl_b32 s64, s64, 13')
    k.op('s_add_u32 s64, s64, s3')
    k.op(f's_add_u32 s64, s64, {1536*256}')

    k.op(f'buffer_load_dword v{VDUM}, v{VL128}, s[12:15], s64 offen', nowait=True)
    for r in range(8):
        k.op(f's_add_u32 s3, s22, {r*MB}')
        k.op(f'buffer_load_dword v{VDUM}, v{VL128}, s[60:63], s3 offen', nowait=True)
        if r < 4:
            k.op(f'buffer_load_dword v{VDUM}, v{VL128}, s[8:11], s3 offen', nowait=True)
    stamp(k, 8)
    k.op(f'v_and_b32 v{VFL}, 31, v{VLANE}')
    k.op(f'v_lshlrev_b32 v{VFL}, 5, v{VFL}')
    k.op(f's_lshl_b32 s21, {QT}, 10')
    k.op(f's_add_u32 s21, s21, {FL_XN}')
    k.op(f'v_add_u32 v{VFL}, s21, v{VFL}')
    wg_poll(k, 1)
    for st in range(3):
        run(k, q.dma(st))
    run(k, dma_kv(0))
    run(k, dma_kv(1))
    for t in range(Q_DX):
        for qb in range(2):
            run(k, q.xload1(t, qb))
    k.wait_all()
    k.op('s_barrier')
    stamp(k, 9)
    k.op('s_branch L_c1_q')


def wave_allreduce_add(k, regs, tmps):
    pats = ['quad_perm:[1,0,3,2]', 'quad_perm:[2,3,0,1]', 'row_half_mirror', 'row_mirror']
    for p in pats:
        k.op('s_nop 0')
        for r in regs:
            k.op(f'v_add_f32_dpp v{r}, v{r}, v{r} {p} row_mask:0xf bank_mask:0xf')
    for sw in ('v_permlane16_swap_b32', 'v_permlane32_swap_b32'):
        for r, t in zip(regs, tmps):
            k.op(f'v_mov_b32 v{t}, v{r}')
        k.op('s_nop 0')
        for r, t in zip(regs, tmps):
            k.op(f'{sw} v{r}, v{t}')
        for r, t in zip(regs, tmps):
            k.op(f'v_add_f32 v{r}, v{r}, v{t}')


LX = [[80 + 16 * r + i for i in range(16)] for r in range(2)]
LT = [[112 + 16 * r + i for i in range(16)] for r in range(2)]
LPK = 196
RJ = [(r, j) for j in range(8) for r in range(2)]


def pr(a):
    return f'v[{a}:{a+1}]'


def gen_ln_sub(k):
    X, T = LX, LT
    SUM, TMP, MEANB, SD, RC = [144, 146], [148, 149], [150, 152], [154, 156], [158, 160]
    S2 = [180, 182, 184, 186]
    k.label('L_ln')
    for c in range(4):
        r, hh = c // 2, c % 2
        k.op(f'v_pk_add_f32 {pr(S2[c])}, {pr(X[r][8*hh])}, {pr(X[r][8*hh+2])}')
    for j in (2, 3):
        for c in range(4):
            r, hh = c // 2, c % 2
            k.op(f'v_pk_add_f32 {pr(S2[c])}, {pr(S2[c])}, {pr(X[r][8*hh+2*j])}')
    for r in range(2):
        k.op(f'v_pk_add_f32 {pr(SUM[r])}, {pr(S2[2*r])}, {pr(S2[2*r+1])}')
    for r in range(2):
        k.op(f'v_add_f32 v{SUM[r]}, v{SUM[r]}, v{SUM[r]+1}')
    wave_allreduce_add(k, SUM, TMP)
    for r in range(2):
        k.op(f'v_mul_f32 v{SUM[r]}, s21, v{SUM[r]}')
    for r, j in RJ:
        k.op(f'v_pk_add_f32 {pr(T[r][2*j])}, {pr(X[r][2*j])}, {pr(SUM[r])} op_sel_hi:[1,0] neg_lo:[0,1] neg_hi:[0,1]')
    for r in range(2):
        k.op(f'v_cvt_pk_bf16_f32 v{MEANB[r]}, v{SUM[r]}, v{SUM[r]}')
    for r in range(2):
        k.op(f'v_and_b32 v{MEANB[r]}, 0xffff0000, v{MEANB[r]}')
    for c in range(4):
        r, hh = c // 2, c % 2
        k.op(f'v_pk_mul_f32 {pr(S2[c])}, {pr(T[r][8*hh])}, {pr(T[r][8*hh])}')
    for j in (1, 2, 3):
        for c in range(4):
            r, hh = c // 2, c % 2
            k.op(f'v_pk_fma_f32 {pr(S2[c])}, {pr(T[r][8*hh+2*j])}, {pr(T[r][8*hh+2*j])}, {pr(S2[c])}')
    for r in range(2):
        k.op(f'v_pk_add_f32 {pr(SUM[r])}, {pr(S2[2*r])}, {pr(S2[2*r+1])}')
    for r in range(2):
        k.op(f'v_add_f32 v{SUM[r]}, v{SUM[r]}, v{SUM[r]+1}')
    xc = []
    for r, j in RJ:
        a = X[r][2 * j]
        xc.append(f'v_pk_add_f32 {pr(a)}, {pr(a)}, {pr(MEANB[r])} op_sel_hi:[1,0] neg_lo:[0,1] neg_hi:[0,1]')
    for r, j in RJ:
        a, b = X[r][2 * j], X[r][2 * j + 1]
        xc.append(f'v_cvt_pk_bf16_f32 v{b}, v{a}, v{b}')
    for r, j in RJ:
        a, b = X[r][2 * j], X[r][2 * j + 1]
        xc.append(f'v_lshlrev_b32 v{a}, 16, v{b}')
        xc.append(f'v_and_b32 v{b}, 0xffff0000, v{b}')
    ch = Rec()
    wave_allreduce_add(ch, SUM, TMP)

    def rb(dst, src):
        for r in range(2):
            ch.op(f'v_cvt_pk_bf16_f32 v{dst[r]}, v{src[r]}, v{src[r]}')
        for r in range(2):
            ch.op(f'v_and_b32 v{dst[r]}, 0xffff0000, v{dst[r]}')
    for r in range(2):
        ch.op(f'v_mul_f32 v{SUM[r]}, s21, v{SUM[r]}')
    rb(SD, SUM)
    for r in range(2):
        ch.op(f'v_add_f32 v{SD[r]}, s22, v{SD[r]}')
    rb(SD, SD)
    for r in range(2):
        ch.op(f'v_sqrt_f32 v{SD[r]}, v{SD[r]}')
    rb(SD, SD)
    for r in range(2):
        ch.op(f'v_rcp_f32 v{RC[r]}, v{SD[r]}')
    chain = [o for o in ch.ops if o != 's_nop 0']
    k.op(xc[0])
    weave(k, chain, [[o] for o in xc[1:]])
    k.op('s_nop 0')
    for r, j in RJ:
        k.op(f'v_pk_mul_f32 {pr(T[r][2*j])}, {pr(X[r][2*j])}, {pr(RC[r])} op_sel_hi:[1,0]')
    for r, j in RJ:
        x, t = X[r][2 * j], T[r][2 * j]
        k.op(f'v_pk_fma_f32 {pr(x)}, {pr(t)}, {pr(SD[r])}, {pr(x)} op_sel_hi:[1,0,1] neg_lo:[1,0,0] neg_hi:[1,0,0]')
    for r, j in RJ:
        x, t = X[r][2 * j], T[r][2 * j]
        k.op(f'v_pk_fma_f32 {pr(t)}, {pr(x)}, {pr(RC[r])}, {pr(t)} op_sel_hi:[1,0,1]')
    for r, j in RJ:
        k.op(f'v_cvt_pk_bf16_f32 v{LPK+8*r+j}, v{T[r][2*j]}, v{T[r][2*j+1]}')
    k.label('L_ln_unpack')
    for r, j in RJ:
        p = LPK + 8 * r + j
        k.op(f'v_lshlrev_b32 v{X[r][2*j]}, 16, v{p}')
        k.op(f'v_and_b32 v{X[r][2*j+1]}, 0xffff0000, v{p}')
    k.op(f's_setpc_b64 {RET2}')


def gen_entry(k):
    X, T = LX, LT
    L = VLANE
    k.op('s_cmp_ge_u32 s2, 256')
    k.op('s_cbranch_scc1 L_end')
    k.op('s_getpc_b64 s[62:63]')
    k.op('s_load_dwordx16 s[72:87], s[0:1], 0')
    k.op('s_load_dwordx8 s[88:95], s[0:1], 64')
    k.op('s_load_dwordx2 s[96:97], s[0:1], 96')
    k.op('s_memrealtime s[64:65]')
    k.op('v_lshrrev_b32 v1, 6, v0')
    k.op(f'v_and_b32 v{VLANE}, 63, v0')
    k.op(f'v_readfirstlane_b32 {WAVE}, v1')
    k.op(f'v_lshlrev_b32 v{VL16}, 4, v{VLANE}')
    k.op(f'v_lshlrev_b32 v{VL128}, 7, v{L}')
    if STAMPS:
        k.op('v_mov_b32 v62, 0')
        k.op('v_mov_b32 v63, 0')
    if CODEPF:
        k.op(f's_cmp_lg_u32 {WAVE}, 3')
        k.op('s_cbranch_scc1 L_nocpf')
        k.op('s_mov_b32 s4, s62')
        k.op('s_and_b32 s5, s63, 0xffff')
        k.op('s_mov_b32 s6, L_code_end-L_code_ref')
        k.op('s_mov_b32 s7, 0x00020000')
        k.op('s_bfe_u32 s3, s2, 0x40003')
        k.op('s_lshl_b32 s3, s3, 13')
        k.raw(f'buffer_load_dword v{VDUM}, v{VL128}, s[4:7], s3 offen')
        k.label('L_nocpf')
    k.op('s_lshr_b32 s21, s2, 1')
    k.op('s_lshl_b32 s21, s21, 4')
    k.op('s_and_b32 s22, s2, 1')
    k.op('s_lshl_b32 s22, s22, 2')
    k.op('s_add_u32 s21, s21, s22')
    k.op(f's_and_b32 s22, {WAVE}, 1')
    k.op('s_lshl_b32 s22, s22, 1')
    k.op('s_add_u32 s21, s21, s22')
    k.op(f's_lshr_b32 s22, {WAVE}, 1')
    k.op('s_lshl_b32 s22, s22, 3')
    k.op('s_add_u32 s21, s21, s22')
    k.op('s_lshl_b32 s23, s21, 11')
    k.wait_all(vm=False)
    srd_off(k, 60, PX, 0, S * D * 2)
    RAW = LPK
    for r in range(2):
        k.op(f'buffer_load_dwordx4 v[{RAW+8*r}:{RAW+3+8*r}], v{VL16}, s[60:63], s23 offen offset:{r*2048}')
        k.op(f'buffer_load_dwordx4 v[{RAW+4+8*r}:{RAW+7+8*r}], v{VL16}, s[60:63], s23 offen offset:{r*2048+1024}')
    stamp(k, 0)
    srd_off(k, SST, PDBG, 0, 256)
    k.op('v_mov_b32 v35, 0')
    k.op(f's_or_b32 s21, s2, {WAVE}')
    k.op('s_cmp_lg_u32 s21, 0')
    k.op('s_cbranch_scc1 L_nononce')
    k.op('s_or_b32 s64, s64, 1')
    k.op('v_mov_b32 v1, s64')
    k.op('s_mov_b64 exec, 1')
    k.raw(f'buffer_store_dword v1, v35, s[{SST}:{SST+3}], 0 offen sc1')
    k.op('s_mov_b64 exec, -1')
    k.label('L_nononce')
    k.op(f's_lshl_b32 {M0B}, {WAVE}, 12')
    k.op(f'v_lshrrev_b32 v{VR4}, 4, v{L}')
    k.op('s_and_b32 s21, s2, 1')
    k.op('s_bfe_u32 s22, s2, 0x10002')
    k.op('s_bfe_u32 s23, s2, 0x10001')
    k.op('s_lshl_b32 s3, s21, 1')
    k.op('s_add_u32 s3, s3, s22')
    k.op(f's_lshl_b32 {HEAD}, s3, 3')
    k.op(f's_bfe_u32 {P3DT}, s2, 0x30003')
    k.op(f's_add_u32 {HEAD}, {HEAD}, {P3DT}')
    k.op('s_lshl_b32 s23, s23, 2')
    k.op('s_lshr_b32 s3, s2, 6')
    k.op(f's_add_u32 {QT}, s3, s23')
    k.op(f's_bfe_u32 {P3ST}, s2, 0x20001')
    k.op(f's_lshl_b32 {P3ST}, {P3ST}, 2')
    k.op(f's_add_u32 {P3ST}, {P3ST}, s3')
    k.op(f's_lshl_b32 {TILE}, {P3ST}, 3')
    k.op(f's_add_u32 {TILE}, {TILE}, {P3DT}')
    k.op(f's_bfe_u32 {M1DT}, s2, 0x20003')
    k.op(f's_add_u32 {M1DT}, {M1DT}, s23')
    k.op('s_lshr_b32 s3, s2, 5')
    k.op('s_cmp_eq_u32 s21, 0')
    k.op('s_cselect_b32 s23, 8, 6')
    k.op('s_mul_i32 s22, s22, s23')
    k.op(f's_add_u32 {M1FT}, s22, s3')
    k.op('s_cmp_lt_u32 s3, s23')
    k.op(f's_cselect_b32 {HASM}, 1, 0')
    k.op('s_cmp_eq_u32 s21, 0')
    k.op(f's_cselect_b32 s23, {NEARLY}, 0')
    k.op(f's_add_u32 {M1FT}, {M1FT}, s23')
    k.op(f's_lshl_b32 {UFLAG}, {M1DT}, 5')
    k.op(f's_add_u32 {UFLAG}, {UFLAG}, {M1FT}')
    k.op(f's_lshl_b32 {UFLAG}, {UFLAG}, 5')
    k.op(f's_add_u32 {UFLAG}, {UFLAG}, {FL_U}')
    k.op(f's_cmp_eq_u32 {HASM}, 1')
    k.op(f's_cselect_b32 {UFLAG}, {UFLAG}, {FL_DUMMY}')
    k.op(f's_lshr_b32 {GID}, s2, 1')
    k.op(f's_lshl_b32 {GID}, {GID}, 13')
    k.op(f's_mov_b32 {STHR}, {hx(THR)}')
    k.op(f's_mov_b32 {SOKV}, 0')
    for j in range(1, 4):
        k.op(f's_mov_b32 {FS[j]}, {j*2048}')
    L = VLANE
    t0, t1, t2 = 36, 37, 38
    k.op(f'v_add_u32 v{VL16B}, 4096, v{VL16}')
    k.op(f'v_bfe_u32 v{t0}, v{L}, 2, 2')
    k.op(f'v_xor_b32 v{t1}, v{t0}, v{VR4}')
    k.op(f'v_lshlrev_b32 v{t1}, 6, v{t1}')
    k.op(f'v_and_b32 v{t2}, 3, v{L}')
    k.op(f'v_lshl_add_u32 v{VSWZ}, v{t2}, 4, v{t1}')
    k.op('s_bitcmp1_b32 s2, 0')
    k.op('s_cbranch_scc1 L_e_m')
    setup_q(k, SETA)
    k.op(f's_mov_b32 {WSTR0}, {64*LDQ}')
    k.op(f's_mov_b32 s101, {D*LDQ}')
    srd_off(k, SETB.sw, PWS, 0, 0)
    srd_off(k, SETB.sx, PWS, 0, 0)
    for v in SETB.vd:
        k.op(f'v_mov_b32 v{v}, 0')
    k.op('s_branch L_e_c')
    k.label('L_e_m')
    setup_m(k, SETA)
    k.op(f's_mul_i32 s{SETA.sw+2}, s{SETA.sw+2}, {HASM}')
    k.op(f's_mov_b32 {WSTR0}, {64*F*2}')
    k.op(f's_mov_b32 s101, {S*F*2}')
    setup_q(k, SETB)
    k.label('L_e_c')
    run(k, dma_w(SETA, 'w0', 0, 0, WSTR0, 's101'))
    k.op(f's_mov_b32 s21, {hx(1.0/1024)}')
    k.op(f's_mov_b32 s22, {hx(1e-5)}')
    k.op(f's_mov_b32 s64, {hx(QSCALE)}')
    k.op(f'buffer_load_dword v39, v35, s[{SST}:{SST+3}], 0 offen sc1')
    k.op(f'v_mov_b32 v1, v{RAW+15}')
    stamp(k, 1)
    run(k, dma_w(SETA, 'w0', 1, 1, WSTR0, 's101'))
    k.op(f's_call_b64 {RET2}, L_ln_unpack')
    k.op(f's_call_b64 {RET2}, L_ln')
    stamp(k, 10)
    PITCH = 2048
    XS = 164
    k.op(f's_lshl_b32 {M0B}, {WAVE}, 12')
    k.op(f's_add_u32 s23, {M0B}, {LN_LDS}')
    k.op(f'v_add_u32 v188, s23, v{VL16}')
    for r, j in RJ:
        k.op(f'v_pk_mul_f32 {pr(T[r][2*j])}, {pr(X[r][2*j])}, s[64:65] op_sel_hi:[1,0]')
    for r, j in RJ:
        k.op(f'v_cvt_pk_bf16_f32 v{XS+8*r+j}, v{T[r][2*j]}, v{T[r][2*j+1]}')
    for r in range(2):
        k.op(f'ds_write_b128 v188, v[{XS+8*r}:{XS+3+8*r}] offset:{r*PITCH}')
        k.op(f'ds_write_b128 v188, v[{XS+4+8*r}:{XS+7+8*r}] offset:{r*PITCH + 1024}')
    k.op(f'v_and_b32 v189, 7, v{L}')
    k.op('v_lshlrev_b32 v190, 11, v189')
    k.op(f'v_lshrrev_b32 v191, 3, v{L}')
    k.op('v_lshl_add_u32 v190, v191, 4, v190')
    k.op(f's_lshl_b32 s23, {WAVE}, 9')
    k.op(f's_add_u32 s23, s23, {LN_LDS}')
    k.op('v_add_u32 v190, s23, v190')
    k.op('v_lshlrev_b32 v192, 9, v191')
    k.op(f'v_and_b32 v193, 3, v{L}')
    k.op('v_lshl_add_u32 v192, v193, 4, v192')
    k.op(f'v_bfe_u32 v193, v{L}, 2, 1')
    k.op('v_lshl_add_u32 v192, v193, 7, v192')
    k.op('s_lshr_b32 s3, s2, 2')
    k.op('s_lshl_b32 s3, s3, 16')
    k.op('s_bfe_u32 s65, s2, 0x10001')
    k.op('s_lshl_b32 s65, s65, 8')
    k.op('s_add_u32 s3, s3, s65')
    k.op('s_and_b32 s65, s2, 1')
    k.op('s_lshl_b32 s65, s65, 6')
    k.op('s_add_u32 s3, s3, s65')
    k.op(f's_lshl_b32 s65, {WAVE}, 14')
    k.op('s_add_u32 s3, s3, s65')
    srd_off(k, 60, PWS, 0, 8 * MB)
    k.wait_all(vm=False)
    k.op('s_barrier')
    for ii in range(4):
        k.op(f'ds_read_b128 v[{64+4*ii}:{67+4*ii}], v190 offset:{ii*128}')
    for ii in range(4):
        k.op(f'buffer_store_dwordx4 v[{64+4*ii}:{67+4*ii}], v192, s[60:63], s3 offen sc1', tag=('xst', ii))
        k.op('s_add_u32 s3, s3, 4096')
    run(k, dma_w(SETA, 'w0', 2, 2, WSTR0, 's101'))
    stamp(k, 11)
    k.op(f's_call_b64 {RET2}, L_ln')
    stamp(k, 14)
    for r in range(2):
        k.op(f'ds_write_b128 v188, v[{LPK+8*r}:{LPK+3+8*r}] offset:{16384 + r*PITCH}')
        k.op(f'ds_write_b128 v188, v[{LPK+4+8*r}:{LPK+7+8*r}] offset:{16384 + r*PITCH + 1024}')
    k.op(f'v_lshrrev_b32 v{VR4}, 4, v{L}')
    k.op(f'v_bfe_u32 v190, v{L}, 2, 2')
    k.op('v_lshlrev_b32 v190, 11, v190')
    k.op(f'v_lshl_add_u32 v190, v{VR4}, 5, v190')
    k.op(f'v_and_b32 v191, 3, v{L}')
    k.op('v_lshl_add_u32 v190, v191, 3, v190')
    k.op('v_add_u32 v190, s23, v190')
    k.op(f'v_lshrrev_b32 v191, 5, v{L}')
    k.op('v_lshlrev_b32 v191, 17, v191')
    k.op(f'v_and_b32 v193, 31, v{L}')
    k.op('v_lshl_add_u32 v191, v193, 4, v191')
    k.op('s_lshl_b32 s22, s2, 9')
    k.op(f's_add_u32 s22, s22, {WS_H}')
    k.op(f's_lshl_b32 s23, {WAVE}, 20')
    k.op('s_add_u32 s22, s22, s23')
    srd_off(k, SFL, PWS, WS_FLAG, 65536)
    k.op('s_mov_b32 s64, 0x200000')
    k.op('s_lshl_b32 s101, s2, 5')
    k.op(f's_add_u32 s21, s101, {FL_XN}')
    k.need([('xst', 3)])
    k.wait_all(vm=False)
    k.label('L_nonce_loop')
    k.op(f'v_readfirstlane_b32 {NONCE}, v39')
    k.op(f's_cmp_lg_u32 {NONCE}, 0')
    k.op('s_cbranch_scc1 L_nonce_ok')
    k.op(f'buffer_load_dword v39, v35, s[{SST}:{SST+3}], 0 offen sc1')
    k.wait_all()
    k.op('s_sub_u32 s64, s64, 1')
    k.op('s_cmp_lg_u32 s64, 0')
    k.op('s_cbranch_scc1 L_nonce_loop')
    k.label('L_nonce_ok')
    stamp(k, 16)
    k.op('s_barrier')
    for ii in range(4):
        k.op(f'ds_read_b64_tr_b16 v[{96+4*ii}:{97+4*ii}], v190 offset:{16384 + ii*128}')
        k.op(f'ds_read_b64_tr_b16 v[{98+4*ii}:{99+4*ii}], v190 offset:{16384 + ii*128 + 4*PITCH}')
    flag_store(k, 's21')
    for ii in range(4):
        k.op(f'buffer_store_dwordx4 v[{96+4*ii}:{99+4*ii}], v191, s[60:63], s22 offen sc1', tag=('hst', ii))
        k.op('s_add_u32 s22, s22, 262144')
    stamp(k, 2)
    k.need([('hst', 3)])
    k.op('s_barrier')
    flag_store(k, 's101')
    stamp(k, 3)
    k.op(f'v_lshrrev_b32 v{t1}, 5, v{L}')
    k.op(f'v_lshl_add_u32 v{t1}, v{t1}, 2, v{t0}')
    k.op(f'v_lshlrev_b32 v{t1}, 8, v{t1}')
    k.op(f'v_bfe_u32 v39, v{L}, 4, 1')
    k.op(f'v_lshl_add_u32 v{t1}, v39, 5, v{t1}')
    k.op(f'v_lshl_add_u32 v{t1}, v{t2}, 3, v{t1}')
    for mb in range(4):
        k.op(f'v_xor_b32 v1, {mb}, v{t0}')
        k.op(f'v_lshl_add_u32 v{VGA[mb]}, v1, 6, v{t1}')
        k.op(f'v_add_u32 v{VGA2[mb]}, 0x10000, v{VGA[mb]}')
        k.op(f'v_add_u32 v{VV[mb]}, {KVB + 8192}, v{VGA[mb]}')
    k.op(f'v_lshrrev_b32 v{t1}, 5, v{L}')
    k.op(f'v_lshl_add_u32 v{t1}, v{t1}, 3, v{t0}')
    k.op(f'v_lshlrev_b32 v{t1}, 8, v{t1}')
    k.op(f'v_lshl_add_u32 v{t1}, v39, 5, v{t1}')
    k.op(f'v_and_b32 v1, 1, v{L}')
    k.op(f'v_lshl_add_u32 v{t1}, v1, 4, v{t1}')
    k.op(f'v_bfe_u32 v1, v{L}, 1, 1')
    k.op(f'v_lshl_add_u32 v{t1}, v1, 3, v{t1}')
    for mb in range(4):
        k.op(f'v_xor_b32 v1, {mb}, v{t0}')
        k.op(f'v_lshl_add_u32 v{VAQ[mb]}, v1, 6, v{t1}')
    k.op(f'v_and_b32 v{t0}, 31, v{L}')
    k.op(f'v_lshlrev_b32 v{t0}, 8, v{t0}')
    k.op(f'v_add_u32 v{t0}, {KVB}, v{t0}')
    k.op(f'v_and_b32 v{t1}, 15, v{L}')
    k.op(f'v_lshrrev_b32 v{t2}, 5, v{L}')
    k.op(f'v_xor_b32 v{t1}, v{t1}, v{t2}')
    for ks in range(8):
        k.op(f'v_xor_b32 v{t2}, {2*ks}, v{t1}')
        k.op(f'v_lshl_add_u32 v{VK[ks]}, v{t2}, 4, v{t0}')
    k.op(f's_and_b32 s21, {WAVE}, 1')
    k.op('s_lshl_b32 s21, s21, 12')
    k.op(f'v_lshlrev_b32 v{t2}, 8, v{VR4}')
    k.op(f'v_add_u32 v{t2}, s21, v{t2}')
    k.op(f's_cmp_ge_u32 {WAVE}, 2')
    k.op('s_cbranch_scc1 L_q_vw')
    k.op(f'v_and_b32 v{t1}, 15, v{L}')
    k.op(f'v_xor_b32 v{t1}, v{t1}, v{VR4}')
    k.op(f'v_lshlrev_b32 v{t1}, 4, v{t1}')
    k.op(f'v_add_u32 v{t2}, {1536*256}, v{t2}')
    for q in range(4):
        k.op(f'v_xor_b32 v{VD2[q]}, {q*64}, v{t1}')
        k.op(f'v_add_u32 v{VD2[q]}, v{VD2[q]}, v{t2}')
    k.op('s_branch L_q_vw_done')
    k.label('L_q_vw')
    k.op(f'v_add_u32 v{t2}, {(1536-32)*256}, v{t2}')
    for q in range(4):
        k.op(f'v_add_u32 v{VD2[q]}, v{VSWZ}, v{t2}')
    k.label('L_q_vw_done')
    k.op(f's_cmp_ge_u32 {WAVE}, 2')
    k.op(f's_cselect_b32 s60, s{PV}, s{PK}')
    k.op(f's_cselect_b32 s61, s{PV+1}, s{PK+1}')
    k.op(f's_lshr_b32 s21, {HEAD}, 3')
    k.op('s_lshl_b32 s21, s21, 19')
    k.op(f's_sub_u32 s22, {HKV*SK*DH*2}, s21')
    srd_off(k, SKV, 60, 's21', 's22')
    k.op('s_bitcmp1_b32 s2, 0')
    k.op('s_cbranch_scc1 L_c1')
    k.op('s_branch L_c0')
    k.label('L_end')
    k.op('s_endpgm')


def assemble():
    head = open('recurrent_scan__sliding_block_cached__mixer_token_mlp__prompt.s.ref').read()
    hl = []
    for line in head.splitlines():
        if line.startswith('; Override'):
            break
        hl.append(line)
    out = '\n'.join(hl) + '\n'
    out += '; @launch grid=(256,1,1) block=(256,1,1) lds=163840\n'
    out += '.amdgcn_target "amdgcn-amd-amdhsa--gfx950"\n.text\n'
    segs = [gen_entry, gen_ln_sub, gen_class0, gen_poll, gen_q_rescale, gen_class1_pf, gen_class1]
    text, desc, stats, n = build_kernel(KNAME, segs, vgpr=512, accum=256, short='mk')
    print(f'{n} lines, dyn {stats}', file=sys.stderr)
    text = text.replace('  s_load_dwordx16 s[72:87]', 'L_code_ref:\n  s_load_dwordx16 s[72:87]', 1)
    out += text + 'L_code_end:\n.section .rodata,"a"\n' + desc
    return out


if __name__ == '__main__':
    if len(sys.argv) > 2 and sys.argv[2] == 'final':
        STAMPS = False
    open(sys.argv[1] if len(sys.argv) > 1 else 'mk.s', 'w').write(assemble())
```

```python
import sys, struct, math
from asmgen import K, build_kernel

S, D, HQ, HKV, DH, SK, W, F = 2048, 1024, 32, 4, 128, 2048, 512, 3584
KNAME = 'recurrent_scan__sliding_block_cached__mixer_token_mlp__prompt_kernel'
MB = 1 << 20
WS_XN = 0
WS_H = 4 * MB
WS_O = 8 * MB
WS_U = 24 * MB
WS_G = 32 * MB
WS_FLAG = 40 * MB
FL_H, FL_O, FL_U, FL_G, FL_DUMMY, FL_XN = 0, 8192, 16384, 24576, 32768, 40960
PX, PK, PV, PWQ, PWO, PBX, PW1, PB1, PW2, PB2, POUT, PDBG, PWS = [72 + 2 * i for i in range(13)]
NEARLY = 12

STAMPS = True
CODEPF = True
THR = 16.0
QSCALE = math.log2(math.e) / math.sqrt(DH)
GELU_C0 = -2.0 * math.log2(math.e) * math.sqrt(2.0 / math.pi)
GELU_C1 = GELU_C0 * 0.044715

WAVE, M0B, CNT = 's16', 's19', 's20'
SX2, SKV, SST, SFL = 24, 28, 32, 52
HEAD, QT, M1DT, M1FT, P3DT, P3ST, NONCE, SOKV = [f's{i}' for i in range(36, 44)]
RET2 = 's[48:49]'
STHR, WSTR0 = 's50', 's51'
TILE, GID, UFLAG, HASM = 's68', 's69', 's70', 's71'
FS = ['0', 's98', 's99', 's100']
VLANE, VL16 = 2, 3
VAQ = [8, 9, 10, 11]
VD2 = [12, 13, 14, 15]
VK = list(range(16, 24))
VV = [24, 25, 26, 27]
LS = [28, 29]
TM = [30, 31, 32]
VSWZ, VR4 = 33, 34
VGA = [40, 41, 42, 43]
VGA2 = [44, 45, 46, 47]
VF4 = [52, 53, 54, 55]
VL16B = 57
VL128, VDUM, VFL, VFV = 58, 59, 60, 61
LN_LDS = 131072
KVB = 65536


class Set:
    def __init__(self, sw, sx, sow, sox, vd):
        self.sw, self.sx, self.sow, self.sox, self.vd = sw, sx, sow, sox, vd


SETA = Set(8, 12, 's17', 's18', [4, 5, 6, 7])
SETB = Set(4, 44, 's66', 's67', [48, 49, 50, 51])


def f2u(x):
    return struct.unpack('<I', struct.pack('<f', x))[0]


def hx(x):
    return f'0x{f2u(x):08x}'


class Rec:
    def __init__(self):
        self.ops = []

    def op(self, t, **kw):
        if t.startswith('s_addc_u32'):
            self.ops[-1] = [self.ops[-1], t]
            return
        self.ops.append((t, kw) if kw else t)


def srd_off(k, d, plo, off, nrec):
    if off == 0:
        k.op(f's_mov_b32 s{d}, s{plo}')
        k.op(f's_and_b32 s{d+1}, s{plo+1}, 0xffff')
    else:
        k.op(f's_add_u32 s{d}, s{plo}, {off}')
        k.op(f's_addc_u32 s{d+1}, s{plo+1}, 0')
        k.op(f's_and_b32 s{d+1}, s{d+1}, 0xffff')
    k.op(f's_mov_b32 s{d+2}, {nrec}')
    k.op(f's_mov_b32 s{d+3}, 0x00020000')


def stamp(k, i):
    if not STAMPS:
        return
    k.op('s_memtime s[56:57]')
    k.op('s_memrealtime s[58:59]')
    k.wait_all(vm=False)
    k.op(f'v_writelane_b32 v62, s56, {i}')
    k.op(f'v_writelane_b32 v63, s58, {i}')


DBGWG = None


def stamp_dump(k):
    if not STAMPS:
        return
    lab = k.newlabel('nostamp')
    k.op(f's_cmp_lg_u32 {WAVE}, 0')
    k.op(f's_cbranch_scc1 {lab}')
    if DBGWG is not None:
        k.op(f's_cmp_lg_u32 s2, {DBGWG}')
        k.op(f's_cbranch_scc1 {lab}')
        srd_off(k, 60, PDBG, 0, 64)
        k.op(f'v_subrev_u32 v63, {NONCE}, v63')
        k.op(f'v_lshlrev_b32 v1, 2, v{VLANE}')
        k.op('s_mov_b64 exec, -2')
        k.op('buffer_store_dword v63, v1, s[60:63], 0 offen')
    else:
        srd_off(k, 60, PWS, 64 * MB, MB)
        k.op('s_lshl_b32 s64, s2, 9')
        k.op(f'v_lshlrev_b32 v1, 3, v{VLANE}')
        k.op('buffer_store_dwordx2 v[62:63], v1, s[60:63], s64 offen')
    k.wait_all()
    k.label(lab)


def run(k, ops):
    for o in ops:
        k._do(o)
        if isinstance(o, str) and ' m0,' in o:
            k.op('s_nop 0')


def flag_store(k, off_sreg):
    lab = k.newlabel('nopub')
    k.raw(f's_cmp_lg_u32 {WAVE}, 0')
    k.raw(f's_cbranch_scc1 {lab}')
    k.raw(f'v_mov_b32 v1, {off_sreg}')
    k.raw(f'v_mov_b32 v56, {NONCE}')
    k.raw('s_mov_b64 exec, 1')
    k.raw(f'buffer_store_dword v56, v1, s[{SFL}:{SFL+3}], 0 offen sc1')
    k.raw('s_mov_b64 exec, -1')
    k.raw('s_nop 3')
    k.label(lab)


def flag_issue(k, n):
    for j in range(n):
        k.op(f'buffer_load_dword v{VF4[j]}, v{VFL}, s[{SFL}:{SFL+3}], {FS[j]} offen sc1')


def flag_test(k, n):
    if n == 1:
        k.op(f'v_cmp_ne_u32 vcc, {NONCE}, v{VF4[0]}')
        return
    for j in range(4):
        k.op(f'v_xor_b32 v{VF4[j]}, {NONCE}, v{VF4[j]}')
    k.op(f'v_or3_b32 v{VF4[0]}, v{VF4[0]}, v{VF4[1]}, v{VF4[2]}')
    k.op(f'v_or_b32 v{VF4[0]}, v{VF4[0]}, v{VF4[3]}')
    k.op(f'v_cmp_ne_u32 vcc, 0, v{VF4[0]}')


def flag_check(k, n):
    lab = k.newlabel('fok')
    flag_test(k, n)
    k.raw(f's_cbranch_vccz {lab}')
    k.raw(f's_call_b64 {RET2}, L_poll{n}')
    k.label(lab)


def gen_poll(k):
    for n in (1, 4):
        k.label(f'L_poll{n}')
        k.op('s_mov_b32 s64, 0x200000')
        k.label(f'L_poll{n}_loop')
        flag_issue(k, n)
        k.wait_all(lg=False)
        flag_test(k, n)
        k.op(f's_cbranch_vccz L_poll{n}_done')
        k.op('s_sleep 1')
        k.op('s_sub_u32 s64, s64, 1')
        k.op('s_cmp_lg_u32 s64, 0')
        k.op(f's_cbranch_scc1 L_poll{n}_loop')
        k.label(f'L_poll{n}_done')
        k.op(f's_setpc_b64 {RET2}')


def wg_poll(k, n):
    lab = k.newlabel('wp')
    k.raw(f's_cmp_lg_u32 {WAVE}, 0')
    k.raw(f's_cbranch_scc1 {lab}')
    k.raw(f's_call_b64 {RET2}, L_poll{n}')
    k.label(lab)
    k.op('s_barrier')


def weave(k, main, fill, start=0, stop=None):
    n = len(main)
    stop = n if stop is None else stop
    nf = len(fill)
    fi = 0
    for i, o in enumerate(main):
        k._do(o)
        if i >= start:
            tgt = min(nf, (nf * (i - start + 1)) // max(1, stop - start))
            while fi < tgt:
                for x in fill[fi]:
                    k._do(x)
                fi += 1
    while fi < nf:
        run(k, fill[fi])
        fi += 1


def dma_items(ops):
    return [[ops[0]], [ops[1]], [ops[2]], [ops[3]], [ops[4], ops[5]]]


def vd_ops(st, ldw):
    ops = [f's_mul_i32 s21, {WAVE}, {16*ldw}',
           f'v_mul_u32_u24 v{st.vd[0]}, {ldw}, v{VR4}',
           f'v_add3_u32 v{st.vd[0]}, v{st.vd[0]}, v{VSWZ}, s21']
    for q in range(1, 4):
        ops.append(f'v_add_u32 v{st.vd[q]}, {q*(4*ldw-1024)}, v{st.vd[0]}')
    ops.append(f's_mov_b32 {st.sow}, 0')
    ops.append(f's_mov_b32 {st.sox}, 0')
    return ops


class Adv(list):
    pass


def adv(reg, inc, lim):
    a = Adv([f's_add_u32 {reg}, {reg}, {inc}'])
    if lim is not None:
        a.append(f's_cmp_eq_u32 {reg}, {lim}')
        a.append(f's_cselect_b32 {reg}, 0, {reg}')
    return a


def dma_w(st, name, stage, slot, stride, lim=None):
    ops = [f's_add_u32 m0, {M0B}, {slot*16384}']
    for q in range(4):
        ops.append((f'buffer_load_dwordx4 v{st.vd[q]}, s[{st.sw}:{st.sw+3}], {st.sow} offen offset:{q*1024} lds',
                    dict(tag=(name, stage, q))))
    ops.append(adv(st.sow, stride, lim))
    return ops


def dma_kv(sp):
    ops = [f's_add_u32 m0, {M0B}, {KVB + (sp % 4)*16384}']
    for q in range(4):
        ops.append((f'buffer_load_dwordx4 v{VD2[q]}, s[{SKV}:{SKV+3}], {SOKV} offen offset:{q*1024} lds',
                    dict(tag=('kv', sp, q))))
    ops.append(adv(SOKV, 8192, None))
    return ops


def setup_m(k, st):
    for o in vd_ops(st, F * 2):
        k.op(o)
    k.op(f's_lshl_b32 s21, {M1FT}, 8')
    k.op(f's_sub_u32 s22, {S*F*2}, s21')
    srd_off(k, st.sw, PW1, 's21', 's22')
    k.op(f's_lshl_b32 s21, {M1DT}, 2')
    k.op(f's_add_u32 s21, s21, {WAVE}')
    k.op('s_lshl_b32 s22, s21, 17')
    k.op(f's_add_u32 s22, s22, {WS_H}')
    srd_off(k, st.sx, PWS, 's22', 131072)
    k.op(f's_mul_i32 {st.sow}, {M1DT}, {4*64*F*2}')
    k.op(f's_lshl_b32 {st.sox}, {M1DT}, 14')


def setup_q(k, st):
    ldw = HQ * DH * 2
    for o in vd_ops(st, ldw):
        k.op(o)
    k.op(f's_lshl_b32 s21, {HEAD}, 8')
    k.op(f's_sub_u32 s22, {D*ldw}, s21')
    srd_off(k, st.sw, PWQ, 's21', 's22')
    k.op(f's_lshl_b32 s21, {QT}, 3')
    k.op(f's_lshl_b32 s22, {WAVE}, 1')
    k.op('s_add_u32 s21, s21, s22')
    k.op('s_lshl_b32 s22, s21, 16')
    srd_off(k, st.sx, PWS, 's22', 65536)
    k.op('s_add_u32 s22, s22, 65536')
    srd_off(k, SX2, PWS, 's22', 65536)
    k.op(f's_lshl_b32 {st.sow}, {QT}, 20')
    k.op(f's_lshl_b32 {st.sox}, {QT}, 13')


def setup_mlp2(k, st):
    for o in vd_ops(st, S * 2):
        k.op(o)
    k.op(f's_lshl_b32 s21, {P3ST}, 8')
    k.op(f's_sub_u32 s22, {F*S*2}, s21')
    srd_off(k, st.sw, PW2, 's21', 's22')
    k.op(f's_lshl_b32 s21, {P3DT}, 2')
    k.op(f's_add_u32 s21, s21, {WAVE}')
    k.op(f's_mul_i32 s22, s21, {224*1024}')
    k.op(f's_add_u32 s22, s22, {WS_U}')
    srd_off(k, st.sx, PWS, 's22', 224 * 1024)
    k.op(f'v_min_u32 v{VFL}, {NEARLY-1}, v{VLANE}')
    k.op(f'v_lshlrev_b32 v{VFL}, 5, v{VFL}')
    k.op(f's_lshl_b32 s21, {P3DT}, 10')
    k.op(f's_add_u32 s21, s21, {FL_U}')
    k.op(f'v_add_u32 v{VFL}, s21, v{VFL}')


def late_mlp2(k):
    k.op(f'v_and_b32 v{VFL}, 15, v{VLANE}')
    k.op(f'v_lshlrev_b32 v{VFL}, 5, v{VFL}')
    k.op(f's_lshl_b32 s21, {P3DT}, 10')
    k.op(f's_add_u32 s21, s21, {FL_U + NEARLY*32}')
    k.op(f'v_add_u32 v{VFL}, s21, v{VFL}')


def setup_oproj(k, st):
    for o in vd_ops(st, D * 2):
        k.op(o)
    k.op(f's_lshl_b32 s21, {P3DT}, 8')
    k.op(f's_sub_u32 s22, {HQ*DH*D*2}, s21')
    srd_off(k, st.sw, PWO, 's21', 's22')
    k.op(f's_lshl_b32 s21, {P3ST}, 2')
    k.op(f's_add_u32 s21, s21, {WAVE}')
    k.op('s_lshl_b32 s22, s21, 18')
    k.op(f's_add_u32 s22, s22, {WS_O}')
    srd_off(k, st.sx, PWS, 's22', 262144)
    k.op(f'v_and_b32 v{VFL}, 15, v{VLANE}')
    k.op(f'v_lshlrev_b32 v{VFL}, 5, v{VFL}')
    k.op(f's_lshr_b32 s21, {P3ST}, 1')
    k.op('s_lshl_b32 s21, s21, 10')
    k.op(f's_add_u32 s21, s21, {FL_O}')
    k.op(f'v_add_u32 v{VFL}, s21, v{VFL}')


def late_oproj(k):
    k.op(f'v_add_u32 v{VFL}, {16*32}, v{VFL}')


def flags_ln_all(k):
    k.op(f'v_lshlrev_b32 v{VFL}, 5, v{VLANE}')


def bias_load_ops():
    r_ = Rec()
    srd_off(r_, 60, PB1, 0, F * 2)
    r_.op(f'v_lshrrev_b32 v1, 5, v{VLANE}')
    r_.op('v_lshlrev_b32 v1, 3, v1')
    r_.op(f's_lshl_b32 s23, {M1FT}, 8')
    for j in range(16):
        r = 96 + 2 * j
        r_.op(f'buffer_load_dwordx2 v[{r}:{r+1}], v1, s[60:63], s23 offen offset:{j*16}')
    return r_.ops


def bias_unpack_ops():
    ops = []
    for j in range(32):
        src = 96 + j
        lo, hi = 64 + 2 * j, 65 + 2 * j
        if hi == src:
            ops.append(f'v_lshlrev_b32 v{lo}, 16, v{src}')
            ops.append(f'v_and_b32 v{hi}, 0xffff0000, v{src}')
        else:
            ops.append(f'v_and_b32 v{hi}, 0xffff0000, v{src}')
            ops.append(f'v_lshlrev_b32 v{lo}, 16, v{src}')
    return ops


G_WF, G_XF = 192, 128
G_R, G_P, G_DX, G_L = 8, 6, 16, 6


class GP:
    def __init__(self, name, st, ldw, nst, w_is_a, acc, rot=False):
        self.name, self.st, self.ldw, self.nst, self.w_is_a, self.acc = name, st, ldw, nst, w_is_a, acc
        self.rot = rot

    def dma(self, stage):
        return dma_w(self.st, self.name, stage, stage % G_R, 64 * self.ldw,
                     64 * self.ldw * self.nst if self.rot else None)

    def xload(self, t):
        r = G_XF + 4 * (t % G_DX)
        st = self.st
        ops = [f'buffer_load_dwordx4 a[{r}:{r+3}], v{VL16}, s[{st.sx}:{st.sx+3}], {st.sox} offen offset:{(t%4)*1024} sc1']
        if t % 4 == 3:
            ops.append(adv(st.sox, 4096, 4096 * self.nst if self.rot else None))
        return ops

    def wread(self, f):
        t, mb = f // 4, f % 4
        stg, kk = t // 4, t % 4
        slot = stg % G_R
        va = (VGA if slot < 4 else VGA2)[mb]
        off = (slot % 4) * 16384 + kk * 4096
        r = G_WF + 4 * (f % 8)
        return [f'ds_read_b64_tr_b16 a[{r}:{r+1}], v{va} offset:{off}',
                (f'ds_read_b64_tr_b16 a[{r+2}:{r+3}], v{va} offset:{off+2048}', dict(tag=(self.name, 'wf', f)))]

    def mfma(self, f, czero=False):
        t, mb = f // 4, f % 4
        wr = G_WF + 4 * (f % 8)
        xr = G_XF + 4 * (t % G_DX)
        acc = self.acc + 16 * mb
        wa, xa = f'a[{wr}:{wr+3}]', f'a[{xr}:{xr+3}]'
        a, b = (wa, xa) if self.w_is_a else (xa, wa)
        c = '0' if czero else f'v[{acc}:{acc+15}]'
        return f'v_mfma_f32_32x32x16_bf16 v[{acc}:{acc+15}], {a}, {b}, {c}'


def g_body(k, g, it, shadow=None, sh_stop=100, czero=False, early_dma=None, tail=None, hooks=None, pub=None):
    nf = g.nst * 16
    pending = list(early_dma or [])
    shadow = shadow or []
    si = 0
    for fb in range(128):
        f = it * 128 + fb
        nd = [(g.name, 'wf', f + 1)] if f % 2 == 0 else None
        k.op(g.mfma(f, czero and f < 4), need=nd)
        if hooks and fb in hooks:
            hooks[fb]()
        fn_ = f + G_L
        if fn_ % 16 == 0:
            stg = fn_ // 16
            if stg < g.nst or tail is None:
                k.need([(g.name, stg, q) for q in range(4)])
            else:
                k.need(tail['need'](stg - g.nst))
            if pub and fb == 122:
                k.need(pub[0])
            k.op('s_barrier')
            if pub and fb == 122:
                flag_store(k, pub[1])
            ns = stg + G_P
            if ns < g.nst or tail is None:
                pending += g.dma(ns)
            else:
                pending += tail['dma'](ns - g.nst) or []
        if pending and isinstance(pending[0], str) and ' m0,' in pending[0]:
            k._do(pending.pop(0))
        if fn_ < nf or tail is None:
            rd = g.wread(fn_)
        else:
            rd = tail['wread'](fn_ - nf) or ['s_nop 0']
        for o in rd:
            k._do(o)
        if f % 4 == 3:
            tn = f // 4 + G_DX
            if tn < g.nst * 4 or tail is None:
                xo = g.xload(tn)
            else:
                xo = tail['x'](tn - g.nst * 4) or []
            for o in xo:
                k._do(o)
        elif pending and (f % 4 == 1 or len(pending) > 6 or fb >= 122):
            k._do(pending.pop(0))
            if pending and isinstance(pending[0], Adv):
                k._do(pending.pop(0))
        tgt = min(len(shadow), (len(shadow) * (fb + 1)) // sh_stop)
        while si < tgt:
            k._do(shadow[si])
            si += 1
    assert not pending, pending
    assert si == len(shadow)


def g_loop(k, g, it0, n, chk=None):
    for it in k.loop(n, CNT, g.name):
        hooks = {}
        if chk is not None:
            l2 = k.newlabel('c2')
            k.raw(f's_cmp_eq_u32 {CNT}, {chk-1}')
            k.raw(f's_cbranch_scc0 {l2}')
            k.raw(f'v_cmp_ne_u32 vcc, {NONCE}, v{VFV}')
            k.raw(f's_cbranch_vccz {l2}')
            k.raw(f's_call_b64 {RET2}, L_poll1')
            k.label(l2)

            def issue():
                l1 = k.newlabel('c1')
                k.raw(f's_cmp_eq_u32 {CNT}, {chk}')
                k.raw(f's_cbranch_scc0 {l1}')
                k.raw(f'buffer_load_dword v{VFV}, v{VFL}, s[{SFL}:{SFL+3}], 0 offen sc1')
                k.label(l1)
            hooks[48] = issue
        g_body(k, g, it0 + it, hooks=hooks)


def post_m_ops(acc, temps):
    r_ = Rec()
    r_.op(f's_lshl_b32 s21, {M1DT}, 2')
    r_.op(f's_add_u32 s21, s21, {WAVE}')
    r_.op(f's_mul_i32 s22, s21, {224*1024}')
    r_.op(f's_add_u32 s22, s22, {WS_U}')
    r_.op(f's_mul_i32 s21, {HASM}, {224*1024}')
    srd_off(r_, SST, PWS, 's22', 's21')
    r_.op(f'v_mov_b32 v35, {hx(GELU_C0)}')
    r_.op(f's_mov_b32 s23, {hx(GELU_C1)}')
    r_.op(f's_lshl_b32 s65, {M1FT}, 13')
    tags = []
    for h8 in range(8):
        b0 = acc + 8 * h8
        for g4 in range(2):
            xs = [b0 + 4 * g4 + i for i in range(4)]
            for x, t in zip(xs, temps):
                r_.op(f'v_mul_f32 v{t}, v{x}, v{x}')
            for x, t in zip(xs, temps):
                r_.op(f'v_fma_f32 v{t}, v{t}, s23, v35')
            for x, t in zip(xs, temps):
                r_.op(f'v_mul_f32 v{t}, v{t}, v{x}')
            for x, t in zip(xs, temps):
                r_.op(f'v_exp_f32 v{t}, v{t}')
            for x, t in zip(xs, temps):
                r_.op(f'v_add_f32 v{t}, 1.0, v{t}')
            for x, t in zip(xs, temps):
                r_.op(f'v_rcp_f32 v{t}, v{t}')
            for x, t in zip(xs, temps):
                r_.op(f'v_mul_f32 v{x}, v{x}, v{t}')
            r_.op(f'v_cvt_pk_bf16_f32 v{b0+2*g4}, v{xs[0]}, v{xs[1]}')
            r_.op(f'v_cvt_pk_bf16_f32 v{b0+2*g4+1}, v{xs[2]}, v{xs[3]}')
        va = VL16 if h8 < 4 else VL16B
        r_.op(f'buffer_store_dwordx4 v[{b0}:{b0+3}], v{va}, s[{SST}:{SST+3}], s65 offen offset:{(h8%4)*1024} sc1',
              tag=('ust', h8))
        tags.append(('ust', h8))
    return r_.ops, tags


def post_q_ops():
    r_ = Rec()
    for qb in range(2):
        r_.op(f'v_mov_b32 v{36+qb}, v{LS[qb]}')
    r_.op(f's_lshl_b32 s21, {QT}, 3')
    r_.op(f's_lshl_b32 s22, {WAVE}, 1')
    for qb in range(2):
        r_.op(f'v_permlane32_swap_b32 v{LS[qb]}, v{36+qb}')
    r_.op('s_add_u32 s21, s21, s22')
    for qb in range(2):
        r_.op(f'v_add_f32 v{LS[qb]}, v{LS[qb]}, v{36+qb}')
    for qb in range(2):
        r_.op(f'v_rcp_f32 v{LS[qb]}, v{LS[qb]}')
    r_.op('s_lshl_b32 s22, s21, 18')
    r_.op(f's_add_u32 s22, s22, {WS_O}')
    srd_off(r_, SST, PWS, 's22', 2 * 262144)
    r_.op(f's_lshl_b32 s65, {HEAD}, 13')
    r_.op('s_add_u32 s23, s65, 262144')
    r_.op(f's_lshl_b32 s3, {QT}, 5')
    r_.op(f's_add_u32 s3, s3, {HEAD}')
    r_.op('s_lshl_b32 s3, s3, 5')
    r_.op(f's_add_u32 s101, s3, {FL_O}')
    tags = []
    n = 0
    for mb in range(4):
        for qb in range(2):
            o = (mb * 2 + qb) * 16
            for half in range(2):
                T = 128 + (n % 8) * 8
                P = 192 + (n % 8) * 4
                for i in range(8):
                    r_.op(f'v_accvgpr_read_b32 v{T+i}, a{o+8*half+i}')
                for i in range(8):
                    r_.op(f'v_mul_f32 v{T+i}, v{T+i}, v{LS[qb]}')
                for j in range(4):
                    r_.op(f'v_cvt_pk_bf16_f32 v{P+j}, v{T+2*j}, v{T+2*j+1}')
                ks = 2 * mb + half
                so = 's65' if qb == 0 else 's23'
                va = VL16 if ks < 4 else VL16B
                r_.op(f'buffer_store_dwordx4 v[{P}:{P+3}], v{va}, s[{SST}:{SST+3}], {so} offen offset:{(ks%4)*1024} sc1',
                      tag=('ost', n))
                tags.append(('ost', n))
                n += 1
    return r_.ops, tags


Q_ACC, Q_WF, Q_XF, Q_DX, Q_L = 128, 192, 0, 8, 4
QF = 128
SB = [128, 160]
CI = 192
PB = 224
FR = 192
LA = 4
LDQ = HQ * DH * 2


class QP:
    def __init__(self, st):
        self.st = st

    def dma(self, stage):
        return dma_w(self.st, 'q', stage, stage % 4, 64 * LDQ, D * LDQ)

    def xload1(self, t, qb):
        r = Q_XF + 8 * (t % Q_DX) + 4 * qb
        sx = self.st.sx if qb == 0 else SX2
        ops = [f'buffer_load_dwordx4 a[{r}:{r+3}], v{VL16}, s[{sx}:{sx+3}], {self.st.sox} offen offset:{(t%4)*1024} sc1']
        if t % 4 == 3 and qb == 1:
            ops.append(adv(self.st.sox, 4096, 65536))
        return ops

    def wread(self, f):
        t, mb = f // 4, f % 4
        stg, kk = t // 4, t % 4
        off = (stg % 4) * 16384 + kk * 4096
        r = Q_WF + 4 * (f % 8)
        return [f'ds_read_b64_tr_b16 a[{r}:{r+1}], v{VAQ[mb]} offset:{off}',
                f'ds_read_b64_tr_b16 a[{r+2}:{r+3}], v{VAQ[mb]} offset:{off+1024}']

    def mfma(self, f, qb, czero=False):
        t, mb = f // 4, f % 4
        wr = Q_WF + 4 * (f % 8)
        xr = Q_XF + 8 * (t % Q_DX) + 4 * qb
        acc = Q_ACC + (mb * 2 + qb) * 16
        c = '0' if czero else f'v[{acc}:{acc+15}]'
        return f'v_mfma_f32_32x32x16_bf16 v[{acc}:{acc+15}], a[{wr}:{wr+3}], a[{xr}:{xr+3}], {c}'


def q_body(k, q, it, shadow=None, sh_stop=52, czero=False, pub=None):
    pending = []
    xp = []
    shadow = shadow or []
    si = 0

    def shade(n):
        nonlocal si
        tgt = min(len(shadow), (len(shadow) * n) // (2 * sh_stop))
        while si < tgt:
            k._do(shadow[si])
            si += 1
    for fb in range(64):
        f = it * 64 + fb
        k.op(q.mfma(f, 0, czero and f < 4))
        fn = f + Q_L
        if fn % 16 == 0:
            stg = fn // 16
            k.need([('q', stg, j) for j in range(4)])
            if pub and fb == 60:
                k.need(pub[0])
            k.op('s_barrier')
            if pub and fb == 60:
                flag_store(k, pub[1])
            pending += q.dma(stg + 2)
            k._do(pending.pop(0))
        rd = q.wread(fn)
        k._do(rd[0])
        if xp:
            run(k, xp)
            xp = []
        shade(2 * fb + 1)
        k.op(q.mfma(f, 1, czero and f < 4))
        k._do(rd[1])
        if f % 4 == 3:
            run(k, q.xload1(f // 4 + Q_DX, 0))
            xp = q.xload1(f // 4 + Q_DX, 1)
            if fb == 63:
                run(k, xp)
                xp = []
        elif pending:
            k._do(pending.pop(0))
            if pending and isinstance(pending[0], Adv):
                k._do(pending.pop(0))
            if fb >= 60 and pending:
                k._do(pending.pop(0))
                if pending and isinstance(pending[0], Adv):
                    k._do(pending.pop(0))
        shade(2 * fb + 2)
    assert not pending and not xp and si == len(shadow)


def maxops(b1):
    ops = []
    for step in range(8):
        for qb in range(2):
            s = SB[b1 % 2] + 16 * qb
            if step == 0:
                ops.append(f'v_max3_f32 v{TM[qb]}, v{s}, v{s+1}, v{s+2}')
            elif step < 7:
                ops.append(f'v_max3_f32 v{TM[qb]}, v{TM[qb]}, v{s+1+2*step}, v{s+2+2*step}')
            else:
                ops.append(f'v_max_f32 v{TM[qb]}, v{TM[qb]}, v{s+15}')
    return ops


def attention(k, extras):
    def qcvt(ks):
        ops = []
        mb, hh = ks // 2, ks % 2
        for qb in range(2):
            acc = Q_ACC + (mb * 2 + qb) * 16 + 8 * hh
            for j in range(4):
                ops.append(f'v_cvt_pk_bf16_f32 v{36+j}, v{acc+2*j}, v{acc+2*j+1}')
            for j in range(4):
                ops.append(f'v_accvgpr_write_b32 a{QF + (qb*8+ks)*4 + j}, v{36+j}')
        return ops

    def kvread(b, j):
        sp = b + 1
        r = FR + 4 * (j % 16)
        so = (sp % 4) * 16384
        if j < 8:
            return [f'ds_read_b128 a[{r}:{r+3}], v{VK[j]} offset:{so}']
        kk, mb = (j - 8) // 4, (j - 8) % 4
        return [f'ds_read_b64_tr_b16 a[{r}:{r+1}], v{VV[mb]} offset:{so + kk*4096}',
                f'ds_read_b64_tr_b16 a[{r+2}:{r+3}], v{VV[mb]} offset:{so + kk*4096 + 2048}']

    def qk(b1, ks, qb, first_zero=False):
        s = SB[b1 % 2] + 16 * qb
        r = FR + 4 * ks
        q = QF + (qb * 8 + ks) * 4
        if ks == 0:
            c = '0' if first_zero else f'v[{CI+16*qb}:{CI+16*qb+15}]'
        else:
            c = f'v[{s}:{s+15}]'
        return f'v_mfma_f32_32x32x16_bf16 v[{s}:{s+15}], a[{r}:{r+3}], a[{q}:{q+3}], {c}'

    def pv(kk, mb, qb, zero=False):
        o = (mb * 2 + qb) * 16
        r = FR + 4 * (8 + kk * 4 + mb)
        p = PB + (qb * 2 + kk) * 4
        c = '0' if zero else f'a[{o}:{o+15}]'
        return f'v_mfma_f32_32x32x16_bf16 a[{o}:{o+15}], a[{r}:{r+3}], v[{p}:{p+3}], {c}'

    k.need([('kv', sp, q) for sp in range(2) for q in range(4)])
    for j in range(8):
        run(k, kvread(-1, j))
    run(k, dma_kv(2))
    run(k, dma_kv(3))
    for ks in range(4):
        for o in qcvt(ks):
            k.op(o)
    k.op('s_nop 0')
    for ks in range(8):
        cv = qcvt(ks + 4) if ks + 4 < 8 else []
        for qb in range(2):
            k.op(qk(0, ks, qb, True))
            for o in cv[8 * qb: 8 * qb + 8]:
                k.op(o)
        if ks >= 4:
            run(k, kvread(0, ks - 4))
    k.op(f'v_mov_b32 v{LS[0]}, 0')
    k.op(f'v_mov_b32 v{LS[1]}, 0')
    k.op('s_nop 7')
    k.op('s_nop 1')
    for o in maxops(0):
        k.op(o)
    for qb in range(2):
        k.op(f'v_mov_b32 v{36+qb}, v{TM[qb]}')
    k.op('s_nop 1')
    for qb in range(2):
        k.op(f'v_permlane32_swap_b32 v{TM[qb]}, v{36+qb}')
    k.op('s_nop 0')
    for qb in range(2):
        k.op(f'v_max_f32 v{TM[qb]}, v{TM[qb]}, v{36+qb}')
    for qb in range(2):
        for i in range(16):
            k.op(f'v_sub_f32 v{CI+16*qb+i}, 0, v{TM[qb]}')
    for qb in range(2):
        for i in range(16):
            k.op(f'v_sub_f32 v{SB[0]+16*qb+i}, v{SB[0]+16*qb+i}, v{TM[qb]}')
    stamp(k, 6)

    for b in range(16):
        last = b == 15
        sb = SB[b % 2]
        ex = []
        for kk in range(2):
            for qb in range(2):
                for j in range(4):
                    a0 = sb + 16 * qb + 8 * kk + 2 * j
                    ex.append(f'v_exp_f32 v{a0}, v{a0}')
                    ex.append(f'v_exp_f32 v{a0+1}, v{a0+1}')
                    ex.append(('cvt', f'v_cvt_pk_bf16_f32 v{PB + (qb*2+kk)*4 + j}, v{a0}, v{a0+1}', a0, qb))
        seq = []
        held = None
        for e in ex:
            if isinstance(e, tuple):
                if held is not None:
                    seq.append(held)
                held = e
            else:
                seq.append(e)
                if held is not None:
                    seq.append(held)
                    held = None
        if held is not None:
            seq.append('s_nop 0')
            seq.append(held)
        slots = [[] for _ in range(32)]
        adds = []
        nseq = len(seq)
        nsl = 23
        for i, e in enumerate(seq):
            sl = i * nsl // nseq
            if isinstance(e, tuple):
                slots[sl].append(e[1])
                adds.append((sl + 1, f'v_add_f32 v{LS[e[3]]}, v{LS[e[3]]}, v{e[2]}'))
                adds.append((sl + 1, f'v_add_f32 v{LS[e[3]]}, v{LS[e[3]]}, v{e[2]+1}'))
            else:
                slots[sl].append(e)
        ai = 0
        for sl in range(32):
            n = 1 if sl < 23 else 2
            if last:
                n = 0 if sl < 16 else 2
            while n > 0 and ai < len(adds) and adds[ai][0] <= sl:
                slots[sl].append(adds[ai][1])
                ai += 1
                n -= 1
        while ai < len(adds):
            slots[31].append(adds[ai][1])
            ai += 1
        if not last:
            mo = maxops(b + 1)
            for i, o in enumerate(mo):
                slots[23 + i // 2].append(o)
            slots[31].append(f'v_max_f32 v{TM[2]}, v{TM[0]}, v{TM[1]}')
            slots[31].append(f'v_cmp_lt_f32 vcc, {STHR}, v{TM[2]}')
        xs = [[] for _ in range(32)]
        for (lo, hi, items) in extras.get(b, []):
            for i, it in enumerate(items):
                xs[lo + (i * (hi - lo)) // len(items)].append(it)
        pending = []
        for sl in range(32):
            j = sl // 2
            qb = sl % 2
            if sl < 16:
                if not last:
                    k.op(qk(b + 1, j, qb))
            else:
                kk, mb = (j - 8) // 4, (j - 8) % 4
                k.op(pv(kk, mb, qb, b == 0 and kk == 0))
            jn = j + LA
            bn = b
            if jn >= 16:
                jn -= 16
                bn = b + 1
            skip = (bn == 15 and jn < 8) or bn > 15
            if qb == 0 and jn == 0 and bn <= 15:
                k.need([('kv', bn + 1, q) for q in range(4)])
                k.op('s_barrier')
                if bn + 3 <= 16:
                    pending += dma_kv(bn + 3)
            if not skip:
                rd = kvread(bn, jn)
                if len(rd) == 2:
                    k._do(rd[qb])
                elif qb == 0:
                    k._do(rd[0])
            for it in xs[sl]:
                for o in it:
                    k._do(o)
            for o in slots[sl]:
                k.op(o)
            if pending:
                k._do(pending.pop(0))
                if pending and isinstance(pending[0], Adv):
                    k._do(pending.pop(0))
        assert not pending
        if not last:
            lab = k.newlabel('norescale')
            k.op(f's_cbranch_vccz {lab}')
            k.op(f's_call_b64 {RET2}, L_q_rescale{(b+1)%2}')
            k.label(lab)


def gen_q_rescale(k):
    for par in range(2):
        sb = SB[par]
        k.label(f'L_q_rescale{par}')
        k.op('s_nop 15')
        for qb in range(2):
            k.op(f'v_mov_b32 v{36+qb}, v{TM[qb]}')
        k.op('s_nop 1')
        for qb in range(2):
            k.op(f'v_permlane32_swap_b32 v{TM[qb]}, v{36+qb}')
        k.op('s_nop 0')
        for qb in range(2):
            k.op(f'v_max3_f32 v{TM[qb]}, v{TM[qb]}, v{36+qb}, 0')
        for qb in range(2):
            k.op(f'v_sub_f32 v{36+qb}, 0, v{TM[qb]}')
        for qb in range(2):
            k.op(f'v_exp_f32 v{36+qb}, v{36+qb}')
        for qb in range(2):
            for i in range(16):
                k.op(f'v_sub_f32 v{sb+16*qb+i}, v{sb+16*qb+i}, v{TM[qb]}')
        k.op('s_branch L_q_rescale_c')
    k.label('L_q_rescale_c')
    for qb in range(2):
        for i in range(16):
            k.op(f'v_sub_f32 v{CI+16*qb+i}, v{CI+16*qb+i}, v{TM[qb]}')
        k.op(f'v_mul_f32 v{LS[qb]}, v{LS[qb]}, v{36+qb}')
    for mb in range(4):
        for qb in range(2):
            o = (mb * 2 + qb) * 16
            for i in range(16):
                k.op(f'v_accvgpr_read_b32 v{240+i}, a{o+i}')
            for i in range(16):
                k.op(f'v_mul_f32 v{240+i}, v{240+i}, v{36+qb}')
            for i in range(16):
                k.op(f'v_accvgpr_write_b32 a{o+i}, v{240+i}')
    k.op('s_nop 3')
    k.op(f's_setpc_b64 {RET2}')


def gather_item(k, wave, ptr, nbytes, add):
    def fn():
        lab = k.newlabel('ga')
        k.raw(f's_cmp_lg_u32 {WAVE}, {wave}')
        k.raw(f's_cbranch_scc1 {lab}')
        k.raw(f's_mov_b32 s60, s{ptr}')
        k.raw(f's_and_b32 s61, s{ptr+1}, 0xffff')
        k.raw(f's_mov_b32 s62, {nbytes}')
        k.raw('s_mov_b32 s63, 0x00020000')
        k.raw(f's_add_u32 s64, {GID}, {add}')
        k.raw(f'buffer_load_dword v{VDUM}, v{VL128}, s[60:63], s64 offen')
        k.label(lab)
    return [fn]


def chunks(ops, n):
    return [ops[i:i + n] for i in range(0, len(ops), n)]


def att_extras(k, g, setup_fn, nflag, more=None):
    ex = {}
    r_ = Rec()
    setup_fn(r_)
    ex[9] = [(2, 22, chunks(r_.ops, 2))]
    ex[10] = [(2, 3, [[lambda: flag_issue(k, nflag)]])]
    ex.setdefault(11, []).append((0, 22, dma_items(g.dma(0)) + dma_items(g.dma(1))))
    ex.setdefault(12, []).append((0, 22, dma_items(g.dma(2)) + dma_items(g.dma(3))))
    ex.setdefault(13, []).append((4, 5, [[lambda: flag_check(k, nflag)]]))
    ex.setdefault(14, []).append((16, 32, [g.xload(t) for t in range(6)]))
    ex.setdefault(15, []).append((0, 20, [g.xload(t) for t in range(6, 16)]))
    for b, lst in (more or {}).items():
        ex.setdefault(b, []).extend(lst)
    return ex


def q_to_g(k, g, czero, late_fn=None):
    k.need([(g.name, 0, q) for q in range(4)])
    k.op('s_barrier')
    stamp(k, 7)
    for f in range(G_L):
        run(k, g.wread(f))
    ops, tags = post_q_ops()
    if late_fn:
        r_ = Rec()
        late_fn(r_)
        ops = ops + r_.ops
    for o in ops[:40]:
        k._do(o)
    early = g.dma(4) + g.dma(5) + g.dma(6)
    g_body(k, g, 0, shadow=ops[40:], sh_stop=96, czero=czero, early_dma=early, pub=(tags, 's101'))


def gen_class0(k):
    k.label('L_c0')
    q = QP(SETA)
    m = GP('m', SETB, F * 2, S // 64, True, 64, rot=True)
    p = GP('p', SETA, S * 2, F // 64, False, 128)
    for st in range(3):
        for j in range(4):
            k.pretag(('q', st, j))
    run(k, dma_kv(0))
    run(k, dma_kv(1))
    k.op(f'v_and_b32 v{VFL}, 31, v{VLANE}')
    k.op(f'v_lshlrev_b32 v{VFL}, 5, v{VFL}')
    k.op(f's_lshl_b32 s21, {QT}, 10')
    k.op(f's_add_u32 s21, s21, {FL_XN}')
    k.op(f'v_add_u32 v{VFL}, s21, v{VFL}')
    k.raw('s_waitcnt vmcnt(8)')
    k.raw(f'v_readfirstlane_b32 {NONCE}, v61')
    wg_poll(k, 1)
    for t in range(Q_DX):
        for qb in range(2):
            run(k, q.xload1(t, qb))
    for f in range(Q_L):
        run(k, q.wread(f))
    for i in range(128):
        k.op(f'v_mov_b32 v{Q_ACC+i}, 0')
    stamp(k, 4)
    for it in k.loop(4, CNT, 'qproj'):
        q_body(k, q, it)
    stamp(k, 5)

    def setup(r_):
        setup_m(r_, SETB)
        flags_ln_all(r_)
    un = bias_unpack_ops()
    more = {2: [(4, 22, chunks(bias_load_ops(), 2))],
            5: [(4, 22, chunks(un[:22], 1))], 6: [(4, 22, chunks(un[22:44], 1))], 8: [(4, 22, chunks(un[44:], 1))]}
    for b in range(10):
        it = gather_item(k, b % 4, PW2, S * F * 2, (8 + b) * MB) if b < 6 else gather_item(k, b % 4, PWO, 8 * MB, (b - 2) * MB)
        more.setdefault(b, []).append((1, 2, [it]))
    attention(k, att_extras(k, m, setup, 4, more))
    q_to_g(k, m, False)
    stamp(k, 8)
    g_loop(k, m, 1, 2)
    setup_mlp2(k, SETA)
    flag_issue(k, 1)
    tail = dict(dma=p.dma, x=p.xload, wread=p.wread, need=lambda s: [('p', s, j) for j in range(4)])
    g_body(k, m, 3, tail=tail, hooks={60: lambda: flag_check(k, 1)})
    stamp(k, 9)
    ops, tags = post_m_ops(64, [192, 193, 194, 195])
    r_ = Rec()
    late_mlp2(r_)
    srd_off(r_, 60, PB2, 0, S * 2)
    r_.op(f'v_and_b32 v1, 31, v{VLANE}')
    r_.op('v_lshlrev_b32 v1, 1, v1')
    r_.op(f's_lshl_b32 s21, {P3ST}, 8')
    for nb in range(4):
        r_.op(f'buffer_load_ushort v{224+nb}, v1, s[60:63], s21 offen offset:{nb*64}')
    g_body(k, p, 0, shadow=r_.ops + ops, sh_stop=104, czero=True, pub=(tags, UFLAG))
    stamp(k, 12)
    g_loop(k, p, 1, 6, chk=6)
    stamp(k, 13)
    k.op(f's_lshl_b32 s22, {TILE}, 15')
    k.op(f's_lshl_b32 s21, {WAVE}, 13')
    k.op('s_add_u32 s22, s22, s21')
    k.op(f's_add_u32 s22, s22, {WS_G}')
    srd_off(k, SST, PWS, 's22', 8192)
    k.op(f's_mov_b32 s22, {hx(-math.log2(math.e))}')
    for nb in range(4):
        k.op(f'v_lshlrev_b32 v{224+nb}, 16, v{224+nb}')
    T = list(range(192, 200))
    for h8 in range(8):
        nb = h8 // 2
        xs = [128 + 8 * h8 + i for i in range(8)]
        for x in xs:
            k.op(f'v_add_f32 v{x}, v{x}, v{224+nb}')
        for x, t in zip(xs, T):
            k.op(f'v_mul_f32 v{t}, s22, v{x}')
        for x, t in zip(xs, T):
            k.op(f'v_exp_f32 v{t}, v{t}')
        for x, t in zip(xs, T):
            k.op(f'v_add_f32 v{t}, 1.0, v{t}')
        for x, t in zip(xs, T):
            k.op(f'v_rcp_f32 v{t}, v{t}')
        for x, t in zip(xs, T):
            k.op(f'v_mul_f32 v{x}, v{x}, v{t}')
        for j in range(4):
            k.op(f'v_cvt_pk_bf16_f32 v{xs[j]}, v{xs[2*j]}, v{xs[2*j+1]}')
        va = VL16 if h8 < 4 else VL16B
        k.op(f'buffer_store_dwordx4 v[{xs[0]}:{xs[3]}], v{va}, s[{SST}:{SST+3}], 0 offen offset:{(h8%4)*1024} sc1')
    k.op(f's_lshl_b32 s21, {TILE}, 5')
    k.op(f's_add_u32 s21, s21, {FL_G}')
    k.wait_all()
    k.op('s_barrier')
    flag_store(k, 's21')
    stamp(k, 15)
    stamp_dump(k)
    k.op('s_endpgm')


def gen_class1(k):
    k.label('L_c1')
    m = GP('m', SETA, F * 2, S // 64, True, 64, rot=True)
    q = QP(SETB)
    p = GP('p', SETA, D * 2, HQ * DH // 64, True, 64)
    for st in range(3):
        for j in range(4):
            k.pretag(('m', st, j))
    k.op(f's_cmp_eq_u32 {HASM}, 0')
    k.op('s_cbranch_scc1 L_c1_pf')
    run(k, bias_load_ops())
    for st in range(3, G_P + 1):
        run(k, m.dma(st))
    flags_ln_all(k)
    for o in bias_unpack_ops():
        k.op(o)
    k.raw(f'v_readfirstlane_b32 {NONCE}, v61')
    wg_poll(k, 4)
    for t in range(G_DX):
        run(k, m.xload(t))
    for f in range(G_L):
        run(k, m.wread(f))
    stamp(k, 8)
    g_loop(k, m, 0, 3)

    def tdma(s):
        if s < 3:
            return q.dma(s)
        if s in (4, 5):
            return dma_kv(s - 4)
        return None
    tail = dict(dma=tdma, x=lambda t: q.xload1(t // 2, t % 2), wread=lambda f: None,
                need=lambda s: [('q', s, j) for j in range(4)])
    g_body(k, m, 3, tail=tail)
    stamp(k, 9)
    k.label('L_c1_q')
    for f in range(Q_L):
        run(k, q.wread(f))
    stamp(k, 4)
    ops, tags = post_m_ops(64, [36, 37, 38, 39])
    for o in ops[:14]:
        k._do(o)
    q_body(k, q, 0, shadow=ops[14:], czero=True, pub=(tags, UFLAG))
    for it in k.loop(3, CNT, 'qproj'):
        q_body(k, q, it + 1)
    stamp(k, 5)
    attention(k, att_extras(k, p, lambda r_: setup_oproj(r_, SETA), 1))
    q_to_g(k, p, True, late_oproj)
    stamp(k, 12)
    g_loop(k, p, 1, 6, chk=5)
    r_ = Rec()
    srd_off(r_, 60, PX, 0, S * D * 2)
    r_.op(f'v_and_b32 v35, 31, v{VLANE}')
    r_.op('v_lshlrev_b32 v35, 11, v35')
    r_.op(f'v_lshrrev_b32 v1, 5, v{VLANE}')
    r_.op('v_lshl_add_u32 v35, v1, 3, v35')
    r_.op(f's_lshl_b32 s21, {P3ST}, 2')
    r_.op(f's_add_u32 s21, s21, {WAVE}')
    r_.op('s_lshl_b32 s65, s21, 16')
    r_.op(f's_lshl_b32 s21, {P3DT}, 8')
    r_.op('s_add_u32 s65, s65, s21')
    r_.op(f's_lshl_b32 s21, {TILE}, 5')
    r_.op(f's_add_u32 s21, s21, {FL_G}')
    r_.op(f'v_mov_b32 v{VFL}, s21')
    r_.op(f's_lshl_b32 s22, {TILE}, 15')
    r_.op(f's_lshl_b32 s21, {WAVE}, 11')
    r_.op('s_add_u32 s22, s22, s21')
    r_.op(f's_add_u32 s22, s22, {WS_G}')
    srd_off(r_, SKV, PWS, 's22', 32768)
    srd_off(r_, SST, POUT, 0, S * D * 2)
    r_.op('s_mov_b32 s21, 8192')
    r_.op('s_mov_b32 s22, 16384')
    r_.op('s_mov_b32 s23, 24576')
    xl = [[f'buffer_load_dwordx2 v[{224+2*j}:{225+2*j}], v35, s[60:63], s65 offen offset:{j*16}'] for j in range(16)]
    gso = ['0', 's21', 's22', 's23']
    gl = [[f'buffer_load_dwordx4 v[{160+4*j}:{163+4*j}], v{VL16}, s[{SKV}:{SKV+3}], {gso[j//2]} offen offset:{(j%2)*1024} sc1']
          for j in range(8)]

    def tx(t):
        if t < 8:
            return xl[2 * t] + xl[2 * t + 1]
        return gl[t - 8]
    tail = dict(dma=lambda s: None, x=tx, wread=lambda f: None, need=lambda s: [])
    g_body(k, p, 7, shadow=r_.ops, sh_stop=40, tail=tail,
           hooks={64: lambda: flag_issue(k, 1), 97: lambda: flag_check(k, 1)})
    stamp(k, 13)
    k.op('s_mov_b32 s3, 0xffff0000')
    A = 64
    T = list(range(192, 208))
    for h8 in range(8):
        xs = [A + 8 * h8 + i for i in range(8)]
        gr = [160 + 4 * h8 + j for j in range(4)]
        xr = [224 + 4 * h8 + j for j in range(4)]
        for j in range(4):
            k.op(f'v_lshlrev_b32 v{T[2*j]}, 16, v{gr[j]}')
            k.op(f'v_and_b32 v{T[2*j+1]}, s3, v{gr[j]}')
            k.op(f'v_lshlrev_b32 v{T[8+2*j]}, 16, v{xr[j]}')
            k.op(f'v_and_b32 v{T[9+2*j]}, s3, v{xr[j]}')
        for j in range(8):
            k.op(f'v_fmac_f32 v{T[8+j]}, v{xs[j]}, v{T[j]}')
        for j in range(4):
            k.op(f'v_cvt_pk_bf16_f32 v{xr[j]}, v{T[8+2*j]}, v{T[9+2*j]}')
        for j2 in range(2):
            k.op(f'buffer_store_dwordx2 v[{xr[2*j2]}:{xr[2*j2+1]}], v35, s[{SST}:{SST+3}], s65 offen offset:{(2*h8+j2)*16}')
    if STAMPS:
        k.wait_all()
    stamp(k, 15)
    stamp_dump(k)
    k.op('s_endpgm')


def gen_class1_pf(k):
    q = QP(SETB)
    k.label('L_c1_pf')
    k.raw('s_waitcnt vmcnt(0)')
    k.raw(f'v_readfirstlane_b32 {NONCE}, v61')
    k.op('s_bfe_u32 s21, s2, 0x20001')
    k.op('s_lshl_b32 s21, s21, 3')
    k.op('s_bfe_u32 s22, s2, 0x30003')
    k.op('s_add_u32 s21, s21, s22')
    k.op('s_lshl_b32 s21, s21, 2')
    k.op(f's_add_u32 s21, s21, {WAVE}')
    srd_off(k, 60, PW2, 0, S * F * 2)
    srd_off(k, 8, PWO, 0, 8 * MB)
    k.op('s_lshl_b32 s22, s21, 13')
    k.op('s_bitcmp1_b32 s21, 6')
    k.op(f's_cselect_b32 s64, s{PV}, s{PK}')
    k.op(f's_cselect_b32 s65, s{PV+1}, s{PK+1}')
    srd_off(k, 12, 64, 0, HKV * SK * DH * 2)
    k.op('s_bfe_u32 s3, s21, 0x20004')
    k.op('s_lshl_b32 s3, s3, 19')
    k.op('s_and_b32 s64, s21, 15')
    k.op('s_lshl_b32 s64, s64, 13')
    k.op('s_add_u32 s64, s64, s3')
    k.op(f's_add_u32 s64, s64, {1536*256}')

    k.op(f'buffer_load_dword v{VDUM}, v{VL128}, s[12:15], s64 offen', nowait=True)
    for r in range(8):
        k.op(f's_add_u32 s3, s22, {r*MB}')
        k.op(f'buffer_load_dword v{VDUM}, v{VL128}, s[60:63], s3 offen', nowait=True)
        if r < 4:
            k.op(f'buffer_load_dword v{VDUM}, v{VL128}, s[8:11], s3 offen', nowait=True)
    stamp(k, 8)
    k.op(f'v_and_b32 v{VFL}, 31, v{VLANE}')
    k.op(f'v_lshlrev_b32 v{VFL}, 5, v{VFL}')
    k.op(f's_lshl_b32 s21, {QT}, 10')
    k.op(f's_add_u32 s21, s21, {FL_XN}')
    k.op(f'v_add_u32 v{VFL}, s21, v{VFL}')
    wg_poll(k, 1)
    for st in range(3):
        run(k, q.dma(st))
    run(k, dma_kv(0))
    run(k, dma_kv(1))
    for t in range(Q_DX):
        for qb in range(2):
            run(k, q.xload1(t, qb))
    k.wait_all()
    k.op('s_barrier')
    stamp(k, 9)
    k.op('s_branch L_c1_q')


def wave_allreduce_add(k, regs, tmps):
    pats = ['quad_perm:[1,0,3,2]', 'quad_perm:[2,3,0,1]', 'row_half_mirror', 'row_mirror']
    for p in pats:
        k.op('s_nop 0')
        for r in regs:
            k.op(f'v_add_f32_dpp v{r}, v{r}, v{r} {p} row_mask:0xf bank_mask:0xf')
    for sw in ('v_permlane16_swap_b32', 'v_permlane32_swap_b32'):
        for r, t in zip(regs, tmps):
            k.op(f'v_mov_b32 v{t}, v{r}')
        k.op('s_nop 0')
        for r, t in zip(regs, tmps):
            k.op(f'{sw} v{r}, v{t}')
        for r, t in zip(regs, tmps):
            k.op(f'v_add_f32 v{r}, v{r}, v{t}')


LX = [[80 + 16 * r + i for i in range(16)] for r in range(2)]
LT = [[112 + 16 * r + i for i in range(16)] for r in range(2)]
LPK = 196
RJ = [(r, j) for j in range(8) for r in range(2)]


def pr(a):
    return f'v[{a}:{a+1}]'


def gen_ln_sub(k):
    X, T = LX, LT
    SUM, TMP, SD, RC = [144, 146], [148, 149], [154, 156], [158, 160]
    S2 = [180, 181, 182, 183]
    RI = [(r, i) for i in range(16) for r in range(2)]
    k.label('L_ln')
    for c in range(4):
        r, hh = c // 2, c % 2
        k.op(f'v_add_f32 v{S2[c]}, v{X[r][8*hh]}, v{X[r][8*hh+1]}')
    for j in range(2, 8):
        for c in range(4):
            r, hh = c // 2, c % 2
            k.op(f'v_add_f32 v{S2[c]}, v{S2[c]}, v{X[r][8*hh+j]}')
    for r in range(2):
        k.op(f'v_add_f32 v{SUM[r]}, v{S2[2*r]}, v{S2[2*r+1]}')
    wave_allreduce_add(k, SUM, TMP)
    for r in range(2):
        k.op(f'v_mul_f32 v{SUM[r]}, s21, v{SUM[r]}')
    for r, i in RI:
        k.op(f'v_sub_f32 v{X[r][i]}, v{X[r][i]}, v{SUM[r]}')
    for c in range(4):
        r, hh = c // 2, c % 2
        k.op(f'v_mul_f32 v{S2[c]}, v{X[r][8*hh]}, v{X[r][8*hh]}')
    for j in range(1, 8):
        for c in range(4):
            r, hh = c // 2, c % 2
            k.op(f'v_fmac_f32 v{S2[c]}, v{X[r][8*hh+j]}, v{X[r][8*hh+j]}')
    for r in range(2):
        k.op(f'v_add_f32 v{SUM[r]}, v{S2[2*r]}, v{S2[2*r+1]}')
    wave_allreduce_add(k, SUM, TMP)

    def rb(dst, src):
        for r in range(2):
            k.op(f'v_cvt_pk_bf16_f32 v{dst[r]}, v{src[r]}, v{src[r]}')
        for r in range(2):
            k.op(f'v_and_b32 v{dst[r]}, s23, v{dst[r]}')
    for r in range(2):
        k.op(f'v_mul_f32 v{SUM[r]}, s21, v{SUM[r]}')
    rb(SD, SUM)
    for r in range(2):
        k.op(f'v_add_f32 v{SD[r]}, s22, v{SD[r]}')
    rb(SD, SD)
    for r in range(2):
        k.op(f'v_sqrt_f32 v{SD[r]}, v{SD[r]}')
    k.op('s_nop 0')
    rb(SD, SD)
    for r in range(2):
        k.op(f'v_rcp_f32 v{RC[r]}, v{SD[r]}')
    k.op('s_nop 0')
    for r, i in RI:
        k.op(f'v_mul_f32 v{X[r][i]}, v{X[r][i]}, v{RC[r]}')
    for r, j in RJ:
        k.op(f'v_cvt_pk_bf16_f32 v{LPK+8*r+j}, v{X[r][2*j]}, v{X[r][2*j+1]}')
    k.op(f's_setpc_b64 {RET2}')
    k.label('L_ln_unpack')
    for r, j in RJ:
        p = LPK + 8 * r + j
        k.op(f'v_lshlrev_b32 v{X[r][2*j]}, 16, v{p}')
        k.op(f'v_and_b32 v{X[r][2*j+1]}, s23, v{p}')
    k.op('s_branch L_ln')


def gen_entry(k):
    X, T = LX, LT
    L = VLANE
    k.op('s_cmp_ge_u32 s2, 256')
    k.op('s_cbranch_scc1 L_end')
    k.op('s_getpc_b64 s[62:63]')
    k.op('s_load_dwordx16 s[72:87], s[0:1], 0')
    k.op('s_load_dwordx8 s[88:95], s[0:1], 64')
    k.op('s_load_dwordx2 s[96:97], s[0:1], 96')
    k.op('s_memrealtime s[64:65]')
    k.op('v_lshrrev_b32 v1, 6, v0')
    k.op(f'v_and_b32 v{VLANE}, 63, v0')
    k.op(f'v_readfirstlane_b32 {WAVE}, v1')
    k.op(f'v_lshlrev_b32 v{VL16}, 4, v{VLANE}')
    k.op(f'v_lshlrev_b32 v{VL128}, 7, v{L}')
    if STAMPS:
        k.op('v_mov_b32 v62, 0')
        k.op('v_mov_b32 v63, 0')
    if CODEPF:
        k.op(f's_cmp_lg_u32 {WAVE}, 3')
        k.op('s_cbranch_scc1 L_nocpf')
        k.op('s_mov_b32 s4, s62')
        k.op('s_and_b32 s5, s63, 0xffff')
        k.op('s_mov_b32 s6, L_code_end-L_code_ref')
        k.op('s_mov_b32 s7, 0x00020000')
        k.op('s_bfe_u32 s3, s2, 0x40003')
        k.op('s_lshl_b32 s3, s3, 13')
        k.raw(f'buffer_load_dword v{VDUM}, v{VL128}, s[4:7], s3 offen')
        k.label('L_nocpf')
    k.op('s_lshr_b32 s21, s2, 1')
    k.op('s_lshl_b32 s21, s21, 4')
    k.op('s_and_b32 s22, s2, 1')
    k.op('s_lshl_b32 s22, s22, 2')
    k.op('s_add_u32 s21, s21, s22')
    k.op(f's_and_b32 s22, {WAVE}, 1')
    k.op('s_lshl_b32 s22, s22, 1')
    k.op('s_add_u32 s21, s21, s22')
    k.op(f's_lshr_b32 s22, {WAVE}, 1')
    k.op('s_lshl_b32 s22, s22, 3')
    k.op('s_add_u32 s21, s21, s22')
    k.op('s_lshl_b32 s23, s21, 11')
    k.wait_all(vm=False)
    srd_off(k, 60, PX, 0, S * D * 2)
    RAW = LPK
    for r in range(2):
        k.op(f'buffer_load_dwordx4 v[{RAW+8*r}:{RAW+3+8*r}], v{VL16}, s[60:63], s23 offen offset:{r*2048}')
        k.op(f'buffer_load_dwordx4 v[{RAW+4+8*r}:{RAW+7+8*r}], v{VL16}, s[60:63], s23 offen offset:{r*2048+1024}')
    stamp(k, 0)
    srd_off(k, SST, PDBG, 0, 256)
    k.op('v_mov_b32 v35, 0')
    k.op('s_lshr_b32 s21, s2, 3')
    k.op(f's_or_b32 s21, s21, {WAVE}')
    k.op('s_cmp_lg_u32 s21, 0')
    k.op('s_cbranch_scc1 L_nononce')
    k.op('s_or_b32 s64, s64, 1')
    k.op('v_mov_b32 v36, s64')
    k.op('v_mov_b32 v37, 0')
    k.op('s_mov_b64 exec, 1')
    k.raw(f'buffer_atomic_cmpswap v[36:37], v35, s[{SST}:{SST+3}], 0 offen sc1')
    k.op('s_mov_b64 exec, -1')
    k.op('s_nop 1')
    k.label('L_nononce')
    k.op(f's_lshl_b32 {M0B}, {WAVE}, 12')
    k.op(f'v_lshrrev_b32 v{VR4}, 4, v{L}')
    k.op('s_and_b32 s21, s2, 1')
    k.op('s_bfe_u32 s22, s2, 0x10002')
    k.op('s_bfe_u32 s23, s2, 0x10001')
    k.op('s_lshl_b32 s3, s21, 1')
    k.op('s_add_u32 s3, s3, s22')
    k.op(f's_lshl_b32 {HEAD}, s3, 3')
    k.op(f's_bfe_u32 {P3DT}, s2, 0x30003')
    k.op(f's_add_u32 {HEAD}, {HEAD}, {P3DT}')
    k.op('s_lshl_b32 s23, s23, 2')
    k.op('s_lshr_b32 s3, s2, 6')
    k.op(f's_add_u32 {QT}, s3, s23')
    k.op(f's_bfe_u32 {P3ST}, s2, 0x20001')
    k.op(f's_lshl_b32 {P3ST}, {P3ST}, 2')
    k.op(f's_add_u32 {P3ST}, {P3ST}, s3')
    k.op(f's_lshl_b32 {TILE}, {P3ST}, 3')
    k.op(f's_add_u32 {TILE}, {TILE}, {P3DT}')
    k.op(f's_bfe_u32 {M1DT}, s2, 0x20003')
    k.op(f's_add_u32 {M1DT}, {M1DT}, s23')
    k.op('s_lshr_b32 s3, s2, 5')
    k.op('s_cmp_eq_u32 s21, 0')
    k.op('s_cselect_b32 s23, 8, 6')
    k.op('s_mul_i32 s22, s22, s23')
    k.op(f's_add_u32 {M1FT}, s22, s3')
    k.op('s_cmp_lt_u32 s3, s23')
    k.op(f's_cselect_b32 {HASM}, 1, 0')
    k.op('s_cmp_eq_u32 s21, 0')
    k.op(f's_cselect_b32 s23, {NEARLY}, 0')
    k.op(f's_add_u32 {M1FT}, {M1FT}, s23')
    k.op(f's_lshl_b32 {UFLAG}, {M1DT}, 5')
    k.op(f's_add_u32 {UFLAG}, {UFLAG}, {M1FT}')
    k.op(f's_lshl_b32 {UFLAG}, {UFLAG}, 5')
    k.op(f's_add_u32 {UFLAG}, {UFLAG}, {FL_U}')
    k.op(f's_cmp_eq_u32 {HASM}, 1')
    k.op(f's_cselect_b32 {UFLAG}, {UFLAG}, {FL_DUMMY}')
    k.op(f's_lshr_b32 {GID}, s2, 1')
    k.op(f's_lshl_b32 {GID}, {GID}, 13')
    k.op(f's_mov_b32 {STHR}, {hx(THR)}')
    k.op(f's_mov_b32 {SOKV}, 0')
    for j in range(1, 4):
        k.op(f's_mov_b32 {FS[j]}, {j*2048}')
    L = VLANE
    t0, t1, t2 = 36, 37, 38
    k.op(f'v_add_u32 v{VL16B}, 4096, v{VL16}')
    k.op(f'v_bfe_u32 v{t0}, v{L}, 2, 2')
    k.op(f'v_xor_b32 v{t1}, v{t0}, v{VR4}')
    k.op(f'v_lshlrev_b32 v{t1}, 6, v{t1}')
    k.op(f'v_and_b32 v{t2}, 3, v{L}')
    k.op(f'v_lshl_add_u32 v{VSWZ}, v{t2}, 4, v{t1}')
    k.op('s_bitcmp1_b32 s2, 0')
    k.op('s_cbranch_scc1 L_e_m')
    setup_q(k, SETA)
    k.op(f's_mov_b32 {WSTR0}, {64*LDQ}')
    k.op(f's_mov_b32 s101, {D*LDQ}')
    srd_off(k, SETB.sw, PWS, 0, 0)
    srd_off(k, SETB.sx, PWS, 0, 0)
    for v in SETB.vd:
        k.op(f'v_mov_b32 v{v}, 0')
    k.op('s_branch L_e_c')
    k.label('L_e_m')
    setup_m(k, SETA)
    k.op(f's_mul_i32 s{SETA.sw+2}, s{SETA.sw+2}, {HASM}')
    k.op(f's_mov_b32 {WSTR0}, {64*F*2}')
    k.op(f's_mov_b32 s101, {S*F*2}')
    setup_q(k, SETB)
    k.label('L_e_c')
    k.op(f's_lshr_b32 s62, {WSTR0}, 1')

    def prefill(st):
        lab = k.newlabel('pf')
        k.raw(f's_cmp_lt_u32 {WAVE}, 2')
        k.raw(f's_cbranch_scc1 {lab}')
        k.raw(f's_add_u32 m0, {M0B}, {st*16384}')
        k.raw(f's_sub_u32 s63, {SETA.sow}, s62')
        for j in range(4):
            k.raw(f'buffer_load_dwordx4 v{SETA.vd[j]}, s[{SETA.sw}:{SETA.sw+3}], {SETA.sow} offen offset:{j*1024} lds')
        k.raw(f's_add_u32 m0, {M0B}, {st*16384 - 8192}')
        k.raw('s_nop 0')
        for j in range(4):
            k.raw(f'buffer_load_dwordx4 v{64+j}, s[{SETA.sw}:{SETA.sw+3}], {SETA.sow} offen offset:{j*1024} lds')
        k.label(lab)
        run(k, [adv(SETA.sow, WSTR0, 's101')])
    for j in range(4):
        k.op(f'v_subrev_u32 v{64+j}, s62, v{SETA.vd[j]}')
    prefill(0)
    k.op(f's_mov_b32 s21, {hx(1.0/1024)}')
    k.op(f's_mov_b32 s22, {hx(1e-5)}')
    k.op('s_mov_b32 s23, 0xffff0000')
    k.op(f's_mov_b32 s64, {hx(QSCALE)}')
    PITCH = 2048
    XS = 164
    k.op(f's_add_u32 s3, {M0B}, {LN_LDS}')
    k.op(f'v_add_u32 v188, s3, v{VL16}')
    k.op(f'v_and_b32 v189, 7, v{L}')
    k.op('v_lshlrev_b32 v190, 11, v189')
    k.op(f'v_lshrrev_b32 v191, 3, v{L}')
    k.op('v_lshl_add_u32 v190, v191, 4, v190')
    k.op(f's_lshl_b32 s65, {WAVE}, 10')
    k.op(f's_add_u32 s65, s65, {LN_LDS}')
    k.op('v_add_u32 v190, s65, v190')
    k.op('v_lshlrev_b32 v192, 9, v191')
    k.op(f'v_lshl_add_u32 v192, v{t2}, 4, v192')
    k.op(f'v_bfe_u32 v193, v{L}, 2, 1')
    k.op('v_lshl_add_u32 v192, v193, 7, v192')
    k.op(f'v_lshlrev_b32 v194, 11, v{t0}')
    k.op(f'v_lshl_add_u32 v194, v{VR4}, 5, v194')
    k.op(f'v_lshl_add_u32 v194, v{t2}, 3, v194')
    k.op('v_add_u32 v194, s65, v194')
    k.op(f'v_lshrrev_b32 v195, 5, v{L}')
    k.op('v_lshlrev_b32 v195, 17, v195')
    k.op(f'v_and_b32 v193, 31, v{L}')
    k.op('v_lshl_add_u32 v195, v193, 4, v195')
    k.op('s_lshr_b32 s3, s2, 2')
    k.op('s_lshl_b32 s3, s3, 16')
    k.op('s_bfe_u32 s65, s2, 0x10001')
    k.op('s_lshl_b32 s65, s65, 8')
    k.op('s_add_u32 s3, s3, s65')
    k.op('s_and_b32 s65, s2, 1')
    k.op('s_lshl_b32 s65, s65, 6')
    k.op('s_add_u32 s3, s3, s65')
    k.op(f's_lshl_b32 s65, {WAVE}, 15')
    k.op('s_add_u32 s3, s3, s65')
    k.op('s_lshl_b32 s0, s2, 9')
    k.op(f's_add_u32 s0, s0, {WS_H}')
    k.op(f's_lshl_b32 s65, {WAVE}, 21')
    k.op('s_add_u32 s0, s0, s65')
    srd_off(k, SKV, PWS, 0, 8 * MB)
    srd_off(k, SFL, PWS, WS_FLAG, 65536)
    k.op('s_lshl_b32 s1, s2, 5')
    k.raw(f's_cmp_lt_u32 {WAVE}, 2')
    k.raw('s_cbranch_scc1 L_xw0')
    k.raw('s_waitcnt vmcnt(8)')
    k.raw('s_branch L_xw1')
    k.label('L_xw0')
    k.raw('s_waitcnt vmcnt(0)')
    k.label('L_xw1')
    k.pend_vm.clear()
    stamp(k, 1)
    prefill(1)
    k.op(f's_call_b64 {RET2}, L_ln_unpack')
    stamp(k, 10)
    k.raw(f'buffer_load_dword v39, v35, s[{SST}:{SST+3}], 0 offen sc1')
    for r in range(2):
        for i in range(16):
            k.op(f'v_mul_f32 v{X[r][i]}, s64, v{X[r][i]}')
    for r, j in RJ:
        k.op(f'v_cvt_pk_bf16_f32 v{XS+8*r+j}, v{X[r][2*j]}, v{X[r][2*j+1]}')
    for r in range(2):
        k.op(f'ds_write_b128 v188, v[{XS+8*r}:{XS+3+8*r}] offset:{r*PITCH}')
        k.op(f'ds_write_b128 v188, v[{XS+4+8*r}:{XS+7+8*r}] offset:{r*PITCH + 1024}')
    k.wait_all(vm=False)
    k.op('s_barrier')
    k.raw(f's_cmp_ge_u32 {WAVE}, 2')
    k.raw('s_cbranch_scc1 L_nox')
    for ii in range(8):
        k.raw(f'ds_read_b128 v[{112+4*ii}:{115+4*ii}], v190 offset:{ii*128}')
    for ii in range(8):
        k.raw(f's_waitcnt lgkmcnt({7-ii})')
        k.raw(f'buffer_store_dwordx4 v[{112+4*ii}:{115+4*ii}], v192, s[{SKV}:{SKV+3}], s3 offen sc1')
        k.raw('s_add_u32 s3, s3, 4096')
    k.label('L_nox')
    prefill(2)
    stamp(k, 11)
    k.op(f's_call_b64 {RET2}, L_ln_unpack')
    stamp(k, 14)
    for r in range(2):
        k.op(f'ds_write_b128 v188, v[{LPK+8*r}:{LPK+3+8*r}] offset:{16384 + r*PITCH}')
        k.op(f'ds_write_b128 v188, v[{LPK+4+8*r}:{LPK+7+8*r}] offset:{16384 + r*PITCH + 1024}')
    k.op('s_mov_b32 s64, 0x200000')
    k.op(f's_add_u32 s21, s1, {FL_XN}')
    k.raw(f's_cmp_ge_u32 {WAVE}, 2')
    k.raw('s_cbranch_scc1 L_nonce_ok')
    k.raw('s_waitcnt vmcnt(0)')
    k.label('L_nonce_loop')
    k.raw(f'v_readfirstlane_b32 {NONCE}, v39')
    k.raw(f's_cmp_lg_u32 {NONCE}, 0')
    k.raw('s_cbranch_scc1 L_nonce_ok')
    k.raw(f'buffer_load_dword v39, v35, s[{SST}:{SST+3}], 0 offen sc1')
    k.raw('s_waitcnt vmcnt(0)')
    k.raw('s_sub_u32 s64, s64, 1')
    k.raw('s_cmp_lg_u32 s64, 0')
    k.raw('s_cbranch_scc1 L_nonce_loop')
    k.label('L_nonce_ok')
    k.wait_all(vm=False)
    stamp(k, 16)
    k.op('s_barrier')
    k.raw(f's_cmp_ge_u32 {WAVE}, 2')
    k.raw('s_cbranch_scc1 L_noh')
    for ii in range(8):
        k.raw(f'ds_read_b64_tr_b16 v[{112+4*ii}:{113+4*ii}], v194 offset:{16384 + ii*128}')
        k.raw(f'ds_read_b64_tr_b16 v[{114+4*ii}:{115+4*ii}], v194 offset:{16384 + ii*128 + 4*PITCH}')
    flag_store(k, 's21')
    for ii in range(8):
        k.raw(f's_waitcnt lgkmcnt({14-2*ii})')
        k.raw(f'buffer_store_dwordx4 v[{112+4*ii}:{115+4*ii}], v195, s[{SKV}:{SKV+3}], s0 offen sc1')
        k.raw('s_add_u32 s0, s0, 262144')
    k.label('L_noh')
    k.raw(f'buffer_load_dword v61, v35, s[{SST}:{SST+3}], 0 offen sc1')
    stamp(k, 2)
    k.op(f'v_lshrrev_b32 v{t1}, 5, v{L}')
    k.op(f'v_lshl_add_u32 v{t1}, v{t1}, 2, v{t0}')
    k.op(f'v_lshlrev_b32 v{t1}, 8, v{t1}')
    k.op(f'v_bfe_u32 v39, v{L}, 4, 1')
    k.op(f'v_lshl_add_u32 v{t1}, v39, 5, v{t1}')
    k.op(f'v_lshl_add_u32 v{t1}, v{t2}, 3, v{t1}')
    for mb in range(4):
        k.op(f'v_xor_b32 v1, {mb}, v{t0}')
        k.op(f'v_lshl_add_u32 v{VGA[mb]}, v1, 6, v{t1}')
        k.op(f'v_add_u32 v{VGA2[mb]}, 0x10000, v{VGA[mb]}')
        k.op(f'v_add_u32 v{VV[mb]}, {KVB + 8192}, v{VGA[mb]}')
    k.op(f'v_lshrrev_b32 v{t1}, 5, v{L}')
    k.op(f'v_lshl_add_u32 v{t1}, v{t1}, 3, v{t0}')
    k.op(f'v_lshlrev_b32 v{t1}, 8, v{t1}')
    k.op(f'v_lshl_add_u32 v{t1}, v39, 5, v{t1}')
    k.op(f'v_and_b32 v1, 1, v{L}')
    k.op(f'v_lshl_add_u32 v{t1}, v1, 4, v{t1}')
    k.op(f'v_bfe_u32 v1, v{L}, 1, 1')
    k.op(f'v_lshl_add_u32 v{t1}, v1, 3, v{t1}')
    for mb in range(4):
        k.op(f'v_xor_b32 v1, {mb}, v{t0}')
        k.op(f'v_lshl_add_u32 v{VAQ[mb]}, v1, 6, v{t1}')
    k.op(f'v_and_b32 v{t0}, 31, v{L}')
    k.op(f'v_lshlrev_b32 v{t0}, 8, v{t0}')
    k.op(f'v_add_u32 v{t0}, {KVB}, v{t0}')
    k.op(f'v_and_b32 v{t1}, 15, v{L}')
    k.op(f'v_lshrrev_b32 v{t2}, 5, v{L}')
    k.op(f'v_xor_b32 v{t1}, v{t1}, v{t2}')
    for ks in range(8):
        k.op(f'v_xor_b32 v{t2}, {2*ks}, v{t1}')
        k.op(f'v_lshl_add_u32 v{VK[ks]}, v{t2}, 4, v{t0}')
    k.op(f's_and_b32 s21, {WAVE}, 1')
    k.op('s_lshl_b32 s21, s21, 12')
    k.op(f'v_lshlrev_b32 v{t2}, 8, v{VR4}')
    k.op(f'v_add_u32 v{t2}, s21, v{t2}')
    k.op(f's_cmp_ge_u32 {WAVE}, 2')
    k.op('s_cbranch_scc1 L_q_vw')
    k.op(f'v_and_b32 v{t1}, 15, v{L}')
    k.op(f'v_xor_b32 v{t1}, v{t1}, v{VR4}')
    k.op(f'v_lshlrev_b32 v{t1}, 4, v{t1}')
    k.op(f'v_add_u32 v{t2}, {1536*256}, v{t2}')
    for q in range(4):
        k.op(f'v_xor_b32 v{VD2[q]}, {q*64}, v{t1}')
        k.op(f'v_add_u32 v{VD2[q]}, v{VD2[q]}, v{t2}')
    k.op('s_branch L_q_vw_done')
    k.label('L_q_vw')
    k.op(f'v_add_u32 v{t2}, {(1536-32)*256}, v{t2}')
    for q in range(4):
        k.op(f'v_add_u32 v{VD2[q]}, v{VSWZ}, v{t2}')
    k.label('L_q_vw_done')
    k.op(f's_cmp_ge_u32 {WAVE}, 2')
    k.op(f's_cselect_b32 s60, s{PV}, s{PK}')
    k.op(f's_cselect_b32 s61, s{PV+1}, s{PK+1}')
    k.op(f's_lshr_b32 s21, {HEAD}, 3')
    k.op('s_lshl_b32 s21, s21, 19')
    k.op(f's_sub_u32 s22, {HKV*SK*DH*2}, s21')
    srd_off(k, SKV, 60, 's21', 's22')
    k.raw(f's_cmp_ge_u32 {WAVE}, 2')
    k.raw('s_cbranch_scc1 L_nohw')
    k.raw('s_waitcnt vmcnt(0)')
    k.label('L_nohw')
    k.op('s_barrier')
    flag_store(k, 's1')
    stamp(k, 3)
    k.op('s_bitcmp1_b32 s2, 0')
    k.op('s_cbranch_scc1 L_c1')
    k.op('s_branch L_c0')
    k.label('L_end')
    k.op('s_endpgm')


def assemble():
    head = open('recurrent_scan__sliding_block_cached__mixer_token_mlp__prompt.s.ref').read()
    hl = []
    for line in head.splitlines():
        if line.startswith('; Override'):
            break
        hl.append(line)
    out = '\n'.join(hl) + '\n'
    out += '; @launch grid=(256,1,1) block=(256,1,1) lds=163840\n'
    out += '.amdgcn_target "amdgcn-amd-amdhsa--gfx950"\n.text\n'
    segs = [gen_entry, gen_ln_sub, gen_class0, gen_poll, gen_q_rescale, gen_class1_pf, gen_class1]
    text, desc, stats, n = build_kernel(KNAME, segs, vgpr=512, accum=256, short='mk')
    print(f'{n} lines, dyn {stats}', file=sys.stderr)
    text = text.replace('  s_load_dwordx16 s[72:87]', 'L_code_ref:\n  s_load_dwordx16 s[72:87]', 1)
    out += text + 'L_code_end:\n.section .rodata,"a"\n' + desc
    return out


if __name__ == '__main__':
    if len(sys.argv) > 2 and sys.argv[2] == 'final':
        STAMPS = False
    if len(sys.argv) > 2 and sys.argv[2].startswith('dbg'):
        DBGWG = int(sys.argv[2][3:])
    open(sys.argv[1] if len(sys.argv) > 1 else 'mk.s', 'w').write(assemble())
```
